```python
import torch

def _softmax(x, axis=-1):
    return torch.softmax(x, dim=axis)
def _gelu(x):
    return torch.nn.functional.gelu(x, approximate="tanh")
def _silu(x):
    return torch.nn.functional.silu(x)
def _sigmoid(x):
    return torch.sigmoid(x)
def _layernorm(x, axis=-1, eps=1e-5):
    m = x.mean(dim=axis, keepdim=True)
    v = x.var(dim=axis, keepdim=True, unbiased=False)
    return (x - m) / torch.sqrt(v + eps)
def _scatter_add(tgt, idx, src, axis=0):
    return tgt.clone().index_add_(axis, idx, src)
def _segment_sum(src, seg, n):
    out = torch.zeros((n,) + src.shape[1:], dtype=src.dtype)
    return out.index_add_(0, seg, src)
def _pad(x, pw):
    flat = tuple(v for pair in reversed(pw) for v in pair)
    return torch.nn.functional.pad(x, flat)

kernel_name = 'standalone__glu_gated_bilinear__prompt'

def setup_inputs():

    _w = (lambda a: (lambda t: t.to(torch.bfloat16) if t.is_floating_point() else t)(torch.as_tensor(a)))
    B, S, D, F = 1, 2048, 640, 1728
    return {
        "x": _w((lambda *s: torch.randn(*s, dtype=torch.bfloat16) * 0.05)(B, S, D)),
        "w_gate": _w((lambda *s: torch.randn(*s, dtype=torch.bfloat16) * 0.05)(D, F) * (D ** -0.5)),
        "w_up": _w((lambda *s: torch.randn(*s, dtype=torch.bfloat16) * 0.05)(D, F) * (D ** -0.5)),
        "w_down": _w((lambda *s: torch.randn(*s, dtype=torch.bfloat16) * 0.05)(F, D) * (F ** -0.5)),
    }

def reference(x, w_gate, w_up, w_down):
    g = torch.einsum("bsd,df->bsf", x, w_gate)
    u = torch.einsum("bsd,df->bsf", x, w_up)
    h = g * u
    return torch.einsum("bsf,fd->bsd", h, w_down)
```

```python
KNAME = "standalone__glu_gated_bilinear__prompt_kernel"

class Asm:
    def __init__(self):
        self.lines = []
        self.nlabel = 0
    def __call__(self, s):
        for l in s.split("\n"):
            self.lines.append("    " + l.strip() if not l.strip().endswith(":") else l.strip())
    def label(self, name):
        self.lines.append(name + ":")
    def newlabel(self, p="L"):
        self.nlabel += 1
        return f"{p}_{self.nlabel}"
    def text(self):
        return "\n".join(self.lines) + "\n"

def kernel_header(launch_lines):
    return "\n".join(launch_lines) + '\n.amdgcn_target "amdgcn-amd-amdhsa--gfx950"\n.text\n'

def kernel_begin(name):
    return f".globl {name}\n.p2align 8\n.type {name},@function\n{name}:\n"

def kernel_desc(name, vgpr=256, sgpr=102, accum=256, wg_y=False):
    s = f""".amdhsa_kernel {name}
  .amdhsa_next_free_vgpr {vgpr}
  .amdhsa_next_free_sgpr {sgpr}
  .amdhsa_accum_offset {accum}
  .amdhsa_group_segment_fixed_size 0
  .amdhsa_kernarg_size 56
  .amdhsa_user_sgpr_count 2
  .amdhsa_user_sgpr_kernarg_segment_ptr 1
  .amdhsa_system_sgpr_workgroup_id_x 1
"""
    if wg_y:
        s += "  .amdhsa_system_sgpr_workgroup_id_y 1\n"
    s += "  .amdhsa_float_denorm_mode_32 3\n  .amdhsa_float_denorm_mode_16_64 3\n"
    s += ".end_amdhsa_kernel\n"
    return s

def rodata_begin():
    return '.section .rodata,"a"\n.p2align 6\n'

def srd(a, d, b, nbytes):
    a(f"s_mov_b32 s{d}, s{b}")
    a(f"s_and_b32 s{d+1}, s{b+1}, 0xffff")
    a(f"s_mov_b32 s{d+2}, {nbytes}")
    a(f"s_mov_b32 s{d+3}, 0x00020000")
```

```python
import sys
sys.path.insert(0, "bench")
from asmlib import *

S_, D_, F_ = 2048, 640, 1728
H_OFF, H_BYTES = 0, 128 * 54 * 1024
WD_OFF, WD_BYTES = 0x800000, 8 * 270 * 1024
FL_OFF, FL_BYTES = 0xC00000, 0x10000
ST_OFF, ST_BYTES = 0x1000000, 0x100000
BIG = 0x80000000

sX, sW, sH, sWD, sOUT, sFL, sDBG, sWDS, sST = 20, 24, 28, 32, 36, 40, 44, 48, 52
sWAVE, sL, sU0, sRB = 56, 57, 58, 59
sT = 60
sXOFF, sWOFF = 70, 71
sM0X, sM0W = 72, 73
sNONCE = 74
sSTAMP = 80

LDS_X = lambda slot: slot * 32768
LDS_W = lambda slot: 98304 + slot * 16384
LDS_TOTAL = 147456

class Cfg:
    def __init__(self, **kw):
        self.MU = 15
        self.D = 3
        self.fused = False
        self.stamps = False
        self.codepf = True
        self.__dict__.update(kw)
        self.NRB = 9 if self.MU == 15 else 8
        self.NMAIN = 27 * self.NRB
        self.NS = 256 - self.NMAIN

def stamp(a, cfg, i):
    if cfg.stamps:
        a(f"s_memtime s[{sSTAMP+2*i}:{sSTAMP+2*i+1}]")

def stamp_rt(a, cfg, i):
    if cfg.stamps:
        a(f"s_memrealtime s[{sSTAMP+2*i}:{sSTAMP+2*i+1}]")

def emit_stamps_out(a, cfg, base_idx, n=10):
    if not cfg.stamps:
        return
    a("s_waitcnt lgkmcnt(0)")
    a(f"s_lshl_b32 s{sT}, s2, 2")
    a(f"s_add_u32 s{sT}, s{sT}, s{sWAVE}")
    a(f"s_add_u32 s{sT}, s{sT}, {base_idx*1024}")
    a(f"s_lshl_b32 s{sT}, s{sT}, 6")
    a("v_mbcnt_lo_u32_b32 v1, -1, 0")
    a("v_mbcnt_hi_u32_b32 v1, -1, v1")
    a("v_mov_b32 v2, 0")
    for i in range(n):
        a(f"v_cmp_eq_u32 vcc, {i}, v1")
        a(f"v_mov_b32 v3, s{sSTAMP+2*i}")
        a("s_nop 1")
        a("v_cndmask_b32 v2, v2, v3, vcc")
    a("v_lshlrev_b32 v1, 2, v1")
    a("v_cmp_gt_u32 vcc, 64, v1")
    a(f"s_and_saveexec_b64 s[{sT+2}:{sT+3}], vcc")
    a(f"buffer_store_dword v2, v1, s[{sST}:{sST+3}], s{sT} offen")
    a(f"s_mov_b64 exec, s[{sT+2}:{sT+3}]")

def srd_off(a, d, b, off, nbytes):
    a(f"s_add_u32 s{d}, s{b}, {off}")
    a(f"s_addc_u32 s{d+1}, s{b+1}, 0")
    a(f"s_and_b32 s{d+1}, s{d+1}, 0xffff")
    a(f"s_mov_b32 s{d+2}, {nbytes}")
    a(f"s_mov_b32 s{d+3}, 0x00020000")

def emit_entry(a, cfg, endlabel):
    stamp(a, cfg, 0)
    stamp_rt(a, cfg, 9)
    a("s_cmp_ge_u32 s2, 256")
    a(f"s_cbranch_scc1 {endlabel}")
    a("s_load_dwordx8 s[4:11], s[0:1], 0")
    a("s_load_dwordx4 s[12:15], s[0:1], 32")
    a("s_load_dwordx2 s[16:17], s[0:1], 48")
    a("v_lshrrev_b32 v2, 6, v0")
    a("v_and_b32 v1, 63, v0")
    a(f"v_readfirstlane_b32 s{sWAVE}, v2")

def emit_codepf(a, cfg, endlabel):
    if not cfg.codepf:
        return
    L = a.newlabel(endlabel + "_pc")
    L2 = a.newlabel(endlabel + "_pfskip")
    a(f"s_getpc_b64 s[{sT}:{sT+1}]")
    a.label(L)
    a("v_lshlrev_b32 v3, 7, v0")
    a(f"v_cmp_gt_u32 vcc, {endlabel}-{L}, v3")
    a(f"s_and_saveexec_b64 s[{sT+2}:{sT+3}], vcc")
    a(f"s_cbranch_execz {L2}")
    a(f"global_load_dword v3, v3, s[{sT}:{sT+1}]")
    a.label(L2)
    a(f"s_mov_b64 exec, s[{sT+2}:{sT+3}]")

def emit_role(a, cfg, sparelabel):
    t0, t1, t2, t3, t4 = sT+4, sT+5, sT+6, sT+7, sT+8
    a(f"s_and_b32 s{t0}, s2, 7")
    a(f"s_lshr_b32 s{t1}, s2, 3")
    a(f"s_lshr_b32 s{t2}, s{t0}, 1")
    a(f"s_and_b32 s{t0}, s{t0}, 1")
    if cfg.MU == 15:
        first7, n7, first6, n6 = 32, 63, 27, 54
    else:
        first7, n7, first6, n6 = 28, 56, 24, 48
    a(f"s_cmp_lt_u32 s{t2}, 3")
    a(f"s_cselect_b32 s{t3}, {first7}, {first6}")
    a(f"s_cselect_b32 s{t4}, {n7-first7}, {n6-first6}")
    a(f"s_cselect_b32 s{sRB}, 37, 43")
    a(f"s_cselect_b32 s{sL}, 7, 6")
    a(f"s_cmp_eq_u32 s{t0}, 0")
    a(f"s_cselect_b32 s{t4}, s{t3}, s{t4}")
    a(f"s_cselect_b32 s{t3}, 0, s{t3}")
    a(f"s_cmp_ge_u32 s{t1}, s{t4}")
    a(f"s_cbranch_scc1 {sparelabel}")
    a(f"s_add_u32 s{t1}, s{t1}, s{t3}")
    a(f"s_mul_i32 s{sRB}, s{sRB}, s{t1}")
    a(f"s_lshr_b32 s{sRB}, s{sRB}, 8")
    a(f"s_mul_i32 s{sL}, s{sL}, s{sRB}")
    a(f"s_sub_u32 s{sL}, s{t1}, s{sL}")
    a(f"s_mul_i32 s{t2}, s{t2}, 7")
    a(f"s_add_u32 s{sL}, s{sL}, s{t2}")
    if cfg.MU == 15:
        a(f"s_mul_i32 s{sU0}, s{sRB}, 113")
        a(f"s_lshr_b32 s{sU0}, s{sU0}, 3")
    else:
        a(f"s_lshl_b32 s{sU0}, s{sRB}, 4")

class Sched:
    def __init__(self):
        self.mf = []
        self.pre = {}
        self.fill = []
    def emit(self, a, maxper=2):
        n = len(self.mf)
        gaps = [[] for _ in range(n)]
        load = [0] * n
        queues = {}
        for (q, e, txt, step, dl) in self.fill:
            queues.setdefault(q, []).append((e, txt, step, dl))
        for q, lst in queues.items():
            pos = 0
            for (e, txt, step, dl) in lst:
                p = max(pos, e)
                while p < n - 1 and load[p] + len(txt) > maxper:
                    p += 1
                assert p <= dl and p < n, (q, e, txt, p, dl)
                gaps[p].extend(txt)
                load[p] += len(txt)
                pos = p + step
        for i in range(n):
            for t in self.pre.get(i, []):
                a(t)
            a(self.mf[i])
            for t in gaps[i]:
                a(t)

def phase1(a, cfg):
    MU, D = cfg.MU, cfg.D
    R = MU + D
    ACC = 16
    XR = ACC + 8 * MU
    WF = XR + 4 * R
    VDX = WF + 16
    VDW = VDX + 8
    VRX = VDW + 4
    VRW = VRX + 4
    VHS = VRW + 1
    assert VHS < 256, VHS
    accg = lambda u: ACC + 8 * u
    accu = lambda u: ACC + 8 * u + 4
    xr = lambda q: XR + 4 * (q % R)
    wf = lambda n, mat: WF + 8 * (n & 1) + 4 * mat
    a("v_lshrrev_b32 v4, 3, v1")
    a("v_and_b32 v5, 7, v1")
    a("v_lshrrev_b32 v6, 4, v1")
    a("v_xor_b32 v7, v5, v6")
    a("v_xor_b32 v8, 4, v7")
    a(f"s_lshl_b32 s{sT}, s{sU0}, 4")
    a(f"s_lshl_b32 s{sT+1}, s{sWAVE}, 6")
    a(f"s_add_u32 s{sT}, s{sT}, s{sT+1}")
    a(f"v_add_u32 v9, s{sT}, v4")
    a("v_mul_u32_u24 v9, 1280, v9")
    a("v_lshl_add_u32 v10, v7, 4, v9")
    a("v_lshl_add_u32 v11, v8, 4, v9")
    for ii in range(8):
        src = "v10" if ii % 2 == 0 else "v11"
        a(f"v_add_u32 v{VDX+ii}, {ii*10240 - (ii%4)*1024}, {src}")
    if MU == 15:
        a(f"s_cmp_eq_u32 s{sWAVE}, 3")
        a(f"s_cselect_b32 s{sT}, {BIG}, 0")
        a(f"v_or_b32 v{VDX+6}, s{sT}, v{VDX+6}")
        a(f"v_or_b32 v{VDX+7}, s{sT}, v{VDX+7}")
    a("v_and_b32 v12, 1, v6")
    a("v_lshlrev_b32 v12, 1, v12")
    a("v_xor_b32 v12, v5, v12")
    a("v_xor_b32 v13, 4, v12")
    a(f"s_and_b32 s{sT}, s{sWAVE}, 1")
    a(f"s_lshl_b32 s{sT}, s{sT}, 5")
    a(f"v_add_u32 v14, s{sT}, v4")
    a("v_mul_u32_u24 v14, 3456, v14")
    a(f"s_lshl_b32 s{sT}, s{sL}, 7")
    a(f"v_add_u32 v14, s{sT}, v14")
    a("v_lshl_add_u32 v12, v12, 4, v14")
    a("v_lshl_add_u32 v13, v13, 4, v14")
    for jj in range(4):
        src = "v12" if jj % 2 == 0 else "v13"
        a(f"v_add_u32 v{VDW+jj}, {jj*8*3456 - jj*1024}, {src}")
    a("v_and_b32 v5, 15, v1")
    a("v_lshrrev_b32 v7, 1, v5")
    a("v_xor_b32 v7, v6, v7")
    a("v_lshlrev_b32 v7, 4, v7")
    a(f"v_lshl_add_u32 v{VRX}, v5, 7, v7")
    a(f"v_xor_b32 v{VRX+1}, 64, v{VRX}")
    a(f"v_add_u32 v{VRX+2}, 65536, v{VRX}")
    a(f"v_add_u32 v{VRX+3}, 65536, v{VRX+1}")
    a("v_lshrrev_b32 v7, 2, v5")
    a("v_lshl_add_u32 v8, v6, 3, v7")
    a("v_lshrrev_b32 v9, 1, v7")
    a("v_and_b32 v10, 1, v6")
    a("v_lshl_add_u32 v9, v10, 1, v9")
    a(f"v_xor_b32 v9, s{sWAVE}, v9")
    a("v_lshlrev_b32 v9, 5, v9")
    a("v_lshl_add_u32 v8, v8, 7, v9")
    a("v_and_b32 v9, 3, v1")
    a("v_lshl_add_u32 v8, v9, 3, v8")
    a(f"v_add_u32 v{VRW}, {LDS_W(0)}, v8")
    a("v_and_b32 v7, 1, v6")
    a(f"v_add_u32 v7, s{sU0}, v7")
    a("v_mul_u32_u24 v7, 55296, v7")
    a("v_lshrrev_b32 v8, 1, v6")
    a("v_lshlrev_b32 v8, 8, v8")
    a("v_lshl_add_u32 v8, v5, 4, v8")
    a("v_add_u32 v7, v7, v8")
    a(f"s_lshl_b32 s{sT}, s{sL}, 11")
    a(f"s_lshl_b32 s{sT+1}, s{sWAVE}, 9")
    a(f"s_add_u32 s{sT}, s{sT}, s{sT+1}")
    a(f"v_add_u32 v{VHS}, s{sT}, v7")
    a(f"s_lshl_b32 s{sM0X}, s{sWAVE}, 13")
    a(f"s_lshl_b32 s{sM0W}, s{sWAVE}, 12")
    a("s_waitcnt lgkmcnt(0)")
    stamp(a, cfg, 1)
    srd(a, sX, 4, S_ * D_ * 2)
    a(f"s_cmp_lt_u32 s{sWAVE}, 2")
    a(f"s_cselect_b32 s{sW}, s6, s8")
    a(f"s_cselect_b32 s{sW+1}, s7, s9")
    a(f"s_and_b32 s{sW+1}, s{sW+1}, 0xffff")
    a(f"s_mov_b32 s{sW+2}, {D_*F_*2}")
    a(f"s_mov_b32 s{sW+3}, 0x00020000")

    def dma_group(c):
        slot = c % 3
        g = []
        g.append([f"s_mov_b32 s{sWOFF}, {c*64*3456}", f"s_add_u32 m0, s{sM0W}, {LDS_W(slot)}"])
        g.append([f"s_movk_i32 s{sXOFF}, {c*128}", f"buffer_load_dwordx4 v{VDW}, s[{sW}:{sW+3}], s{sWOFF} offen lds"])
        for jj in range(1, 4):
            g.append([f"buffer_load_dwordx4 v{VDW+jj}, s[{sW}:{sW+3}], s{sWOFF} offen offset:{jj*1024} lds"])
        for half in range(2):
            g.append([f"s_add_u32 m0, s{sM0X}, {LDS_X(slot) + half*4096}"])
            for i4 in range(4):
                ii = half * 4 + i4
                o = f" offset:{i4*1024}" if i4 else ""
                g.append([f"buffer_load_dwordx4 v{VDX+ii}, s[{sX}:{sX+3}], s{sXOFF} offen{o} lds"])
        return g
    for c in range(3):
        for grp in dma_group(c):
            for t in grp:
                a(t)
            if grp[-1].startswith("s_add_u32 m0"):
                a("s_nop 0")
    srd_off(a, sH, 16, H_OFF, H_BYTES)
    if cfg.stamps:
        srd_off(a, sST, 16, ST_OFF, ST_BYTES)

    def xread(n, u):
        c, s = n >> 1, n & 1
        slot = c % 3
        base = VRX + s + (2 if slot == 2 else 0)
        off = (slot % 2 if slot < 2 else 0) * 32768 + u * 2048
        r = xr(n * MU + u)
        return f"ds_read_b128 v[{r}:{r+3}], v{base} offset:{off}"
    def wread(n, mat, h):
        c, s = n >> 1, n & 1
        slot = c % 3
        off = slot * 16384 + mat * 8192 + s * 4096 + h * 512
        r = wf(n, mat) + 2 * h
        return f"ds_read_b64_tr_b16 v[{r}:{r+1}], v{VRW} offset:{off}"

    a("s_waitcnt vmcnt(24)")
    a("s_barrier")
    stamp(a, cfg, 2)
    for mat in range(2):
        for h in range(2):
            a(wread(0, mat, h))
    for u in range(MU):
        a(xread(0, u))

    sc = Sched()
    NST = 20
    for n in range(NST):
        g0 = len(sc.mf)
        c, s = n >> 1, n & 1
        pre = []
        if s == 1 and n + 1 < NST:
            N = 12 if c + 2 <= 9 else 0
            pre = [f"s_waitcnt vmcnt({N}) lgkmcnt(0)", "s_barrier"]
        else:
            pre = ["s_waitcnt lgkmcnt(0)", "s_nop 0"]
        sc.pre[g0] = pre
        for u in range(MU):
            x = xr(n * MU + u)
            for mat, acc in ((0, accg(u)), (1, accu(u))):
                w = wf(n, mat)
                csrc = "0" if n == 0 else f"v[{acc}:{acc+3}]"
                sc.mf.append(f"v_mfma_f32_16x16x32_bf16 v[{acc}:{acc+3}], v[{w}:{w+3}], v[{x}:{x+3}], {csrc}")
        if n + 1 < NST:
            for mat in range(2):
                for h in range(2):
                    sc.fill.append(("lds", g0, [wread(n + 1, mat, h)], 0, g0 + 2 * MU - 1))
            for u in range(MU):
                e = g0 if u < D else g0 + 2 * (u - D) + 1
                sc.fill.append(("lds", e, [xread(n + 1, u)], 0, g0 + 2 * MU - 1))
        if s == 1 and c + 3 <= 9:
            grps = dma_group(c + 3)
            span = 4 * MU - 6
            for i, grp in enumerate(grps):
                e = g0 + 4 + (i * span) // len(grps)
                sc.fill.append(("dma", e, grp, 1, g0 + 4 * MU - 1))
    sc.emit(a, maxper=2)
    stamp(a, cfg, 3)
    a("s_nop 7")
    sc1 = " sc1" if cfg.fused else ""
    npair = (MU + 1) // 2
    for p in range(npair):
        ua, ub = 2 * p, 2 * p + 1
        for u in (ua, ub):
            if u >= MU:
                continue
            for r in range(4):
                a(f"v_mul_f32 v{accg(u)+r}, v{accg(u)+r}, v{accu(u)+r}")
        dst = accu(ua)
        a(f"v_cvt_pk_bf16_f32 v{dst}, v{accg(ua)}, v{accg(ua)+1}")
        a(f"v_cvt_pk_bf16_f32 v{dst+1}, v{accg(ua)+2}, v{accg(ua)+3}")
        if ub < MU:
            a(f"v_cvt_pk_bf16_f32 v{dst+2}, v{accg(ub)}, v{accg(ub)+1}")
            a(f"v_cvt_pk_bf16_f32 v{dst+3}, v{accg(ub)+2}, v{accg(ub)+3}")
        a(f"s_mov_b32 s{sT}, {p*2*55296}")
        a("s_nop 0")
        a(f"v_permlane16_swap_b32 v{dst}, v{dst+2}")
        a(f"v_permlane16_swap_b32 v{dst+1}, v{dst+3}")
        if ub >= MU:
            a("s_mov_b32 exec_lo, 0x0000ffff")
            a("s_mov_b32 exec_hi, 0x0000ffff")
        a(f"buffer_store_dwordx4 v[{dst}:{dst+3}], v{VHS}, s[{sH}:{sH+3}], s{sT} offen{sc1}")
        if ub >= MU:
            a("s_mov_b64 exec, -1")
    stamp(a, cfg, 4)

def spare(a, cfg):
    t0, t1, t2, t4 = sT+4, sT+5, sT+6, sT+8
    if cfg.MU == 15:
        cnt = [32, 31, 32, 31, 32, 31, 27, 27]
    else:
        cnt = [28, 28, 28, 28, 28, 28, 24, 24]
    cum, acc = [], 0
    for c in cnt:
        cum.append(acc); acc += 32 - c
    assert acc == cfg.NS
    a(f"s_and_b32 s{t0}, s2, 7")
    a(f"s_sub_u32 s{t1}, s{t1}, s{t4}")
    a(f"s_mov_b32 s{t2}, 0")
    for x in range(1, 8):
        if cum[x] != cum[x-1]:
            a(f"s_cmp_ge_u32 s{t0}, {x}")
            a(f"s_cselect_b32 s{t2}, {cum[x]}, s{t2}")
    a(f"s_add_u32 s{t1}, s{t1}, s{t2}")
    sSP = sRB
    a(f"s_mov_b32 s{sSP}, s{t1}")
    NW = 4 * cfg.NS
    T = (540 + NW - 1) // NW
    sGW = sL
    a(f"s_lshl_b32 s{sGW}, s{sSP}, 2")
    a(f"s_add_u32 s{sGW}, s{sGW}, s{sWAVE}")
    a("v_lshrrev_b32 v4, 3, v1")
    a("v_and_b32 v5, 7, v1")
    a("v_lshrrev_b32 v6, 4, v1")
    a("v_and_b32 v12, 1, v6")
    a("v_lshlrev_b32 v12, 1, v12")
    a("v_xor_b32 v12, v5, v12")
    a("v_xor_b32 v13, 4, v12")
    a("v_mul_u32_u24 v14, 1280, v4")
    a("v_lshl_add_u32 v12, v12, 4, v14")
    a("v_lshl_add_u32 v13, v13, 4, v14")
    for jj in range(4):
        src = "v12" if jj % 2 == 0 else "v13"
        a(f"v_add_u32 v{16+jj}, {jj*8*1280 - jj*1024}, {src}")
    a("v_and_b32 v5, 15, v1")
    a("v_lshrrev_b32 v7, 2, v5")
    a("v_lshl_add_u32 v8, v6, 3, v7")
    a("v_lshrrev_b32 v9, 1, v7")
    a("v_and_b32 v10, 1, v6")
    a("v_lshl_add_u32 v9, v10, 1, v9")
    a("v_and_b32 v10, 3, v1")
    a("v_lshlrev_b32 v10, 3, v10")
    a("v_lshl_add_u32 v8, v8, 7, v10")
    WB = 36864
    a(f"s_mul_i32 s{sM0W}, s{sWAVE}, {WB}")
    a(f"v_add_u32 v8, s{sM0W}, v8")
    for q in range(4):
        a(f"v_xor_b32 v10, {q}, v9")
        a(f"v_lshl_add_u32 v{20+q}, v10, 5, v8")
    a("v_lshlrev_b32 v24, 4, v1")
    a("s_waitcnt lgkmcnt(0)")
    srd(a, sWDS, 10, F_ * D_ * 2)
    srd_off(a, sWD, 16, WD_OFF, WD_BYTES)
    if cfg.stamps:
        srd_off(a, sST, 16, ST_OFF, ST_BYTES)
    sc1 = " sc1" if cfg.fused else ""
    NSLOT = 9
    def tile_scalars(i):
        a(f"s_add_u32 s{sT+2}, s{sGW}, {i*NW}")
        a(f"s_mul_i32 s{sT}, s{sT+2}, 6554")
        a(f"s_lshr_b32 s{sT}, s{sT}, 16")
        a(f"s_mul_i32 s{sT+1}, s{sT}, 10")
        a(f"s_sub_u32 s{sT+1}, s{sT+2}, s{sT+1}")
    def issue(i):
        tile_scalars(i)
        a(f"s_mul_i32 s{sT+3}, s{sT}, {32*1280}")
        a(f"s_lshl_b32 s{sT+1}, s{sT+1}, 7")
        a(f"s_add_u32 s{sT+3}, s{sT+3}, s{sT+1}")
        a(f"s_add_u32 m0, s{sM0W}, {(i % NSLOT)*4096}")
        a("s_nop 0")
        for jj in range(4):
            o = f" offset:{jj*1024}" if jj else ""
            a(f"buffer_load_dwordx4 v{16+jj}, s[{sWDS}:{sWDS+3}], s{sT+3} offen{o} lds")
    def process(i):
        base = 32 + (i % 2) * 16
        for q in range(4):
            for h in range(2):
                r = base + 4 * q + 2 * h
                a(f"ds_read_b64_tr_b16 v[{r}:{r+1}], v{20+q} offset:{(i % NSLOT)*4096 + h*512}")
        tile_scalars(i)
        a(f"s_cmp_ge_u32 s{sT}, 54")
        a(f"s_cselect_b32 s{sT+4}, {BIG}, 0")
        a(f"s_mul_i32 s{sT}, s{sT}, 5")
        a(f"s_lshl_b32 s{sT+1}, s{sT+1}, 2")
        a("s_waitcnt lgkmcnt(0)")
        for q in range(4):
            a(f"s_add_u32 s{sT+2}, s{sT+1}, {q}")
            a(f"s_mul_i32 s{sT+3}, s{sT+2}, 52")
            a(f"s_lshr_b32 s{sT+3}, s{sT+3}, 8")
            a(f"s_mul_i32 s{sT+3}, s{sT+3}, 265")
            a(f"s_add_u32 s{sT+3}, s{sT+3}, s{sT+2}")
            a(f"s_add_u32 s{sT+3}, s{sT+3}, s{sT}")
            a(f"s_lshl_b32 s{sT+3}, s{sT+3}, 10")
            a(f"s_or_b32 s{sT+3}, s{sT+3}, s{sT+4}")
            r = base + 4 * q
            a(f"buffer_store_dwordx4 v[{r}:{r+3}], v24, s[{sWD}:{sWD+3}], s{sT+3} offen{sc1}")
    for nu in range(40):
        assert (nu * 52) >> 8 == nu // 5
    i = 0
    while i < T:
        n = min(NSLOT, T - i)
        for j in range(n):
            issue(i + j)
        for j in range(n):
            a(f"s_waitcnt vmcnt({min(63, 4*(n-1-j) + 4*j)})")
            process(i + j)
        i += n
        if i < T:
            a("s_waitcnt vmcnt(0)")
    stamp(a, cfg, 4)

def phase2(a, cfg, standalone):
    ACC = 16
    HR = 96
    NHR = 32
    WV = 224
    VH = 248
    VW = 252
    VO = 253
    acc = lambda mu, nu: ACC + (mu * 5 + nu) * 4
    def wreg(j):
        if j < 64:
            return f"a[{4*j}:{4*j+3}]"
        r = WV + 4 * (j - 64)
        return f"v[{r}:{r+3}]"
    hreg = lambda q: HR + 4 * (q % NHR)
    sRB2, sCB = sRB, sL
    a(f"s_and_b32 s{sT}, s2, 7")
    a(f"s_lshr_b32 s{sT+1}, s2, 3")
    a(f"s_lshr_b32 s{sRB2}, s{sT}, 1")
    a(f"s_lshl_b32 s{sRB2}, s{sRB2}, 3")
    a(f"s_lshr_b32 s{sT+2}, s{sT+1}, 2")
    a(f"s_add_u32 s{sRB2}, s{sRB2}, s{sT+2}")
    a(f"s_and_b32 s{sCB}, s{sT}, 1")
    a(f"s_lshl_b32 s{sCB}, s{sCB}, 2")
    a(f"s_and_b32 s{sT+2}, s{sT+1}, 3")
    a(f"s_add_u32 s{sCB}, s{sCB}, s{sT+2}")
    a(f"s_mul_i32 s{sT}, s{sRB2}, {4*54}")
    a(f"s_mul_i32 s{sT+1}, s{sWAVE}, 14")
    a(f"s_add_u32 s{sT}, s{sT}, s{sT+1}")
    a(f"s_lshl_b32 s{sT}, s{sT}, 10")
    a("v_lshlrev_b32 v4, 4, v1")
    a(f"v_add_u32 v{VH}, s{sT}, v4")
    for mu in range(1, 4):
        a(f"v_add_u32 v{VH+mu}, {mu*55296}, v{VH}")
    a(f"s_mul_i32 s{sT}, s{sCB}, 270")
    a(f"s_mul_i32 s{sT+1}, s{sWAVE}, 70")
    a(f"s_add_u32 s{sT}, s{sT}, s{sT+1}")
    a(f"s_lshl_b32 s{sT}, s{sT}, 10")
    a(f"v_add_u32 v{VW}, s{sT}, v4")
    a("v_and_b32 v5, 15, v1")
    a("v_lshrrev_b32 v6, 4, v1")
    a(f"s_lshl_b32 s{sT}, s{sRB2}, 6")
    a(f"s_lshl_b32 s{sT+1}, s{sWAVE}, 4")
    a(f"s_add_u32 s{sT}, s{sT}, s{sT+1}")
    a(f"v_add_u32 v7, s{sT}, v5")
    a("v_mul_u32_u24 v7, 1280, v7")
    a(f"s_mul_i32 s{sT}, s{sCB}, 160")
    a(f"v_add_u32 v7, s{sT}, v7")
    a("v_and_b32 v8, 1, v6")
    a("v_lshlrev_b32 v8, 5, v8")
    a("v_lshrrev_b32 v9, 1, v6")
    a("v_lshl_add_u32 v8, v9, 4, v8")
    a(f"v_add_u32 v{VO}, v7, v8")
    a(f"v_lshl_add_u32 v{VO+1}, v6, 3, v7")
    sBIGW = sM0X
    a(f"s_cmp_eq_u32 s{sWAVE}, 3")
    a(f"s_cselect_b32 s{sBIGW}, {BIG}, 0")
    if standalone:
        a("s_waitcnt lgkmcnt(0)")
        stamp(a, cfg, 1)
        srd_off(a, sH, 16, H_OFF, H_BYTES)
        srd_off(a, sWD, 16, WD_OFF, WD_BYTES)
        if cfg.stamps:
            srd_off(a, sST, 16, ST_OFF, ST_BYTES)
    srd(a, sOUT, 12, S_ * D_ * 2)
    sc1 = " sc1" if cfg.fused else ""
    sWO, sHO = sWOFF, sXOFF
    def wload(j):
        t = []
        if j % 4 == 0:
            if j >= 60:
                t.append(f"s_or_b32 s{sWO}, s{sBIGW}, {(j//4)*4096}")
            else:
                t.append(f"s_mov_b32 s{sWO}, {(j//4)*4096}")
        o = f" offset:{(j%4)*1024}" if j % 4 else ""
        t.append(f"buffer_load_dwordx4 {wreg(j)}, v{VW}, s[{sWD}:{sWD+3}], s{sWO} offen{o}{sc1}")
        return t
    def hload(i, mu):
        t = []
        if mu == 0 and i % 4 == 0:
            if i >= 12:
                t.append(f"s_or_b32 s{sHO}, s{sBIGW}, {(i//4)*4096}")
            else:
                t.append(f"s_mov_b32 s{sHO}, {(i//4)*4096}")
        o = f" offset:{(i%4)*1024}" if i % 4 else ""
        r = hreg(i * 4 + mu)
        t.append(f"buffer_load_dwordx4 v[{r}:{r+3}], v{VH+mu}, s[{sH}:{sH+3}], s{sHO} offen{o}{sc1}")
        return t
    PD = 6
    NI = 14
    def step_loads(i):
        l = []
        for nu in range(5):
            l.append(wload(i * 5 + nu))
        for mu in range(4):
            l.append(hload(i, mu))
        return l
    for i in range(PD):
        for grp in step_loads(i):
            for t in grp:
                a(t)
    sc = Sched()
    for i in range(NI):
        g0 = len(sc.mf)
        ahead = min(NI - 1, i + PD - 1) - i
        sc.pre[g0] = [f"s_waitcnt vmcnt({9*ahead})", "s_nop 0"]
        for mu in range(4):
            h = hreg(i * 4 + mu)
            for nu in range(5):
                c = acc(mu, nu)
                csrc = "0" if i == 0 else f"v[{c}:{c+3}]"
                sc.mf.append(f"v_mfma_f32_16x16x32_bf16 v[{c}:{c+3}], {wreg(i*5+nu)}, v[{h}:{h+3}], {csrc}")
        if i + PD < NI:
            for k, grp in enumerate(step_loads(i + PD)):
                sc.fill.append(("ld", g0 + 2 * k, grp, 1, g0 + 19))
    if standalone:
        stamp(a, cfg, 2)
    sc.emit(a, maxper=2)
    stamp(a, cfg, 5)
    a("s_nop 7")
    for mu in range(4):
        a(f"s_sub_u32 s{sT}, s{sWAVE}, {mu+1}")
        a(f"s_and_b32 s{sT}, s{sT}, 3")
        a(f"s_mul_i32 s{sT}, s{sT}, 5120")
        a(f"s_add_u32 s{sT}, s{sT}, {mu*4*5120}")
        a(f"v_add_u32 v8, s{sT}, v4")
        for nu in range(5):
            c = acc(mu, nu)
            a(f"ds_write_b128 v8, v[{c}:{c+3}] offset:{nu*1024}")
    a(f"s_mul_i32 s{sT}, s{sWAVE}, {4*5120}")
    a(f"v_add_u32 v8, s{sT}, v4")
    a("s_waitcnt lgkmcnt(0)")
    a("s_barrier")
    for sl in range(4):
        for nu in range(5):
            r = HR + (sl * 5 + nu) * 4
            a(f"ds_read_b128 v[{r}:{r+3}], v8 offset:{sl*5120 + nu*1024}")
    a("s_waitcnt lgkmcnt(0)")
    for nu in range(5):
        for r in range(4):
            b = HR + nu * 4 + r
            a(f"v_add_f32 v{b}, v{b}, v{b+20}")
            a(f"v_add_f32 v{b+40}, v{b+40}, v{b+60}")
            a(f"v_add_f32 v{b}, v{b}, v{b+40}")
    P = ACC
    for nu in range(5):
        b = HR + nu * 4
        a(f"v_cvt_pk_bf16_f32 v{P+2*nu}, v{b}, v{b+1}")
        a(f"v_cvt_pk_bf16_f32 v{P+2*nu+1}, v{b+2}, v{b+3}")
    a("s_nop 1")
    for p in range(2):
        d = P + 4 * p
        a(f"v_permlane16_swap_b32 v{d}, v{d+2}")
        a(f"v_permlane16_swap_b32 v{d+1}, v{d+3}")
    for p in range(2):
        d = P + 4 * p
        o = f" offset:{p*64}" if p else ""
        a(f"buffer_store_dwordx4 v[{d}:{d+3}], v{VO}, s[{sOUT}:{sOUT+3}], 0 offen{o}")
    a(f"buffer_store_dwordx2 v[{P+8}:{P+9}], v{VO+1}, s[{sOUT}:{sOUT+3}], 0 offen offset:128")
    stamp(a, cfg, 6)

def gen_split(cfg):
    K1, K2 = "glu_p1_kernel", "glu_p2_kernel"
    out = kernel_header([
        f"; @launch kernel={K1} grid=(256,1,1) block=(256,1,1) lds={LDS_TOTAL}",
        f"; @launch kernel={K2} grid=(256,1,1) block=(256,1,1) lds=81920"])
    a = Asm()
    emit_entry(a, cfg, "L1_end")
    emit_codepf(a, cfg, "L1_end")
    emit_role(a, cfg, "L1_spare")
    phase1(a, cfg)
    a("s_branch L1_fin")
    a.label("L1_spare")
    spare(a, cfg)
    a.label("L1_fin")
    if cfg.stamps:
        a("s_waitcnt vmcnt(0)")
        stamp(a, cfg, 7)
        stamp_rt(a, cfg, 8)
        emit_stamps_out(a, cfg, 0)
    a.label("L1_end")
    a("s_endpgm")
    out += kernel_begin(K1) + a.text()
    a = Asm()
    emit_entry(a, cfg, "L2_end")
    emit_codepf(a, cfg, "L2_end")
    phase2(a, cfg, True)
    if cfg.stamps:
        a("s_waitcnt vmcnt(0)")
        stamp(a, cfg, 7)
        stamp_rt(a, cfg, 8)
        emit_stamps_out(a, cfg, 1)
    a.label("L2_end")
    a("s_endpgm")
    out += kernel_begin(K2) + a.text()
    out += ".fill 256, 4, 0xbf800000\n"
    out += rodata_begin() + kernel_desc(K1, 512, 102, 256) + ".p2align 6\n" + kernel_desc(K2, 512, 102, 256)
    return out

if __name__ == "__main__":
    import argparse
    ap = argparse.ArgumentParser()
    ap.add_argument("-o", default="out.s")
    ap.add_argument("--mu", type=int, default=15)
    ap.add_argument("--stamps", type=int, default=0)
    ap.add_argument("--codepf", type=int, default=1)
    args = ap.parse_args()
    cfg = Cfg(MU=args.mu, stamps=bool(args.stamps), codepf=bool(args.codepf))
    open(args.o, "w").write(gen_split(cfg))
```

```python
import sys
sys.path.insert(0, "bench")
from asmlib import *

S_, D_, F_ = 2048, 640, 1728
H_OFF, H_BYTES = 0, 128 * 54 * 1024
WD_OFF, WD_BYTES = 0x800000, 8 * 270 * 1024
FL_OFF, FL_BYTES = 0xC00000, 0x10000
ST_OFF, ST_BYTES = 0x1000000, 0x100000
BIG = 0x80000000

sX, sW, sH, sWD, sOUT, sFL, sDBG, sWDS, sST = 20, 24, 28, 32, 36, 40, 44, 48, 52
sWAVE, sL, sU0, sRB = 56, 57, 58, 59
sT = 60
sXOFF, sWOFF = 70, 71
sM0X, sM0W = 72, 73
sNONCE = 74
sSTAMP = 80

LDS_X = lambda slot: slot * 32768
LDS_W = lambda slot: 98304 + slot * 16384
LDS_TOTAL = 147456

class Cfg:
    def __init__(self, **kw):
        self.MU = 15
        self.D = 3
        self.fused = False
        self.stamps = False
        self.codepf = True
        self.spin = 0
        self.__dict__.update(kw)
        self.NRB = 9 if self.MU == 15 else 8
        self.NMAIN = 27 * self.NRB
        self.NS = 256 - self.NMAIN

def stamp(a, cfg, i):
    if cfg.stamps:
        a(f"s_memtime s[{sSTAMP+2*i}:{sSTAMP+2*i+1}]")

def stamp_rt(a, cfg, i):
    if cfg.stamps:
        a(f"s_memrealtime s[{sSTAMP+2*i}:{sSTAMP+2*i+1}]")

def emit_stamps_out(a, cfg, base_idx, n=10):
    if not cfg.stamps:
        return
    a("s_waitcnt lgkmcnt(0)")
    a(f"s_lshl_b32 s{sT}, s2, 2")
    a(f"s_add_u32 s{sT}, s{sT}, s{sWAVE}")
    a(f"s_add_u32 s{sT}, s{sT}, {base_idx*1024}")
    a(f"s_lshl_b32 s{sT}, s{sT}, 6")
    a("v_mbcnt_lo_u32_b32 v1, -1, 0")
    a("v_mbcnt_hi_u32_b32 v1, -1, v1")
    a("v_mov_b32 v2, 0")
    for i in range(n):
        a(f"v_cmp_eq_u32 vcc, {i}, v1")
        a(f"v_mov_b32 v3, s{sSTAMP+2*i}")
        a("s_nop 1")
        a("v_cndmask_b32 v2, v2, v3, vcc")
    a("v_lshlrev_b32 v1, 2, v1")
    a("v_cmp_gt_u32 vcc, 64, v1")
    a(f"s_and_saveexec_b64 s[{sT+2}:{sT+3}], vcc")
    a(f"buffer_store_dword v2, v1, s[{sST}:{sST+3}], s{sT} offen")
    a(f"s_mov_b64 exec, s[{sT+2}:{sT+3}]")

def srd_off(a, d, b, off, nbytes):
    a(f"s_add_u32 s{d}, s{b}, {off}")
    a(f"s_addc_u32 s{d+1}, s{b+1}, 0")
    a(f"s_and_b32 s{d+1}, s{d+1}, 0xffff")
    a(f"s_mov_b32 s{d+2}, {nbytes}")
    a(f"s_mov_b32 s{d+3}, 0x00020000")

def emit_spin(a, cfg):
    if not cfg.spin:
        return
    L = a.newlabel("L_spin" + str(id(a) % 1000))
    a("s_waitcnt vmcnt(0)")
    a.label(L)
    a("s_memrealtime s[76:77]")
    a("s_waitcnt lgkmcnt(0)")
    a("s_sub_u32 s76, s76, s78")
    a(f"s_cmp_lt_u32 s76, {cfg.spin*100}")
    a(f"s_cbranch_scc1 {L}")

def emit_entry(a, cfg, endlabel):
    if cfg.spin:
        a("s_memrealtime s[78:79]")
    stamp(a, cfg, 0)
    stamp_rt(a, cfg, 9)
    a("s_cmp_ge_u32 s2, 256")
    a(f"s_cbranch_scc1 {endlabel}")
    a("s_load_dwordx8 s[4:11], s[0:1], 0")
    a("s_load_dwordx4 s[12:15], s[0:1], 32")
    a("s_load_dwordx2 s[16:17], s[0:1], 48")
    a("v_lshrrev_b32 v2, 6, v0")
    a("v_and_b32 v1, 63, v0")
    a(f"v_readfirstlane_b32 s{sWAVE}, v2")

def emit_codepf(a, cfg, endlabel):
    if not cfg.codepf:
        return
    L = a.newlabel(endlabel + "_pc")
    L2 = a.newlabel(endlabel + "_pfskip")
    a(f"s_getpc_b64 s[{sT}:{sT+1}]")
    a.label(L)
    a("v_lshlrev_b32 v3, 7, v0")
    a(f"v_cmp_gt_u32 vcc, {endlabel}-{L}, v3")
    a(f"s_and_saveexec_b64 s[{sT+2}:{sT+3}], vcc")
    a(f"s_cbranch_execz {L2}")
    a(f"global_load_dword v3, v3, s[{sT}:{sT+1}]")
    a.label(L2)
    a(f"s_mov_b64 exec, s[{sT+2}:{sT+3}]")

def emit_role(a, cfg, sparelabel):
    t0, t1, t2, t3, t4 = sT+4, sT+5, sT+6, sT+7, sT+8
    a(f"s_and_b32 s{t0}, s2, 7")
    a(f"s_lshr_b32 s{t1}, s2, 3")
    a(f"s_lshr_b32 s{t2}, s{t0}, 1")
    a(f"s_and_b32 s{t0}, s{t0}, 1")
    if cfg.MU == 15:
        first7, n7, first6, n6 = 32, 63, 27, 54
    else:
        first7, n7, first6, n6 = 28, 56, 24, 48
    a(f"s_cmp_lt_u32 s{t2}, 3")
    a(f"s_cselect_b32 s{t3}, {first7}, {first6}")
    a(f"s_cselect_b32 s{t4}, {n7-first7}, {n6-first6}")
    a(f"s_cselect_b32 s{sRB}, 37, 43")
    a(f"s_cselect_b32 s{sL}, 7, 6")
    a(f"s_cmp_eq_u32 s{t0}, 0")
    a(f"s_cselect_b32 s{t4}, s{t3}, s{t4}")
    a(f"s_cselect_b32 s{t3}, 0, s{t3}")
    a(f"s_cmp_ge_u32 s{t1}, s{t4}")
    a(f"s_cbranch_scc1 {sparelabel}")
    a(f"s_add_u32 s{t1}, s{t1}, s{t3}")
    a(f"s_mul_i32 s{sRB}, s{sRB}, s{t1}")
    a(f"s_lshr_b32 s{sRB}, s{sRB}, 8")
    a(f"s_mul_i32 s{sL}, s{sL}, s{sRB}")
    a(f"s_sub_u32 s{sL}, s{t1}, s{sL}")
    a(f"s_mul_i32 s{t2}, s{t2}, 7")
    a(f"s_add_u32 s{sL}, s{sL}, s{t2}")
    if cfg.MU == 15:
        a(f"s_mul_i32 s{sU0}, s{sRB}, 113")
        a(f"s_lshr_b32 s{sU0}, s{sU0}, 3")
    else:
        a(f"s_lshl_b32 s{sU0}, s{sRB}, 4")

class Sched:
    def __init__(self):
        self.mf = []
        self.pre = {}
        self.fill = []
    def emit(self, a, maxper=2):
        n = len(self.mf)
        gaps = [[] for _ in range(n)]
        load = [0] * n
        queues = {}
        for (q, e, txt, step, dl) in self.fill:
            queues.setdefault(q, []).append((e, txt, step, dl))
        for q, lst in queues.items():
            pos = 0
            for (e, txt, step, dl) in lst:
                p = max(pos, e)
                while p < n - 1 and load[p] + len(txt) > maxper:
                    p += 1
                assert p <= dl and p < n, (q, e, txt, p, dl)
                gaps[p].extend(txt)
                load[p] += len(txt)
                pos = p + step
        for i in range(n):
            for t in self.pre.get(i, []):
                a(t)
            a(self.mf[i])
            for t in gaps[i]:
                a(t)

def phase1(a, cfg):
    MU, D = cfg.MU, cfg.D
    R = MU + D
    ACC = 16
    XR = ACC + 8 * MU
    WF = XR + 4 * R
    VDX = WF + 16
    VDW = VDX + 8
    VRX = VDW + 4
    VRW = VRX + 4
    VHS = VRW + 1
    assert VHS < 256, VHS
    accg = lambda u: ACC + 8 * u
    accu = lambda u: ACC + 8 * u + 4
    xr = lambda q: XR + 4 * (q % R)
    wf = lambda n, mat: WF + 8 * (n & 1) + 4 * mat
    a("v_lshrrev_b32 v4, 3, v1")
    a("v_and_b32 v5, 7, v1")
    a("v_lshrrev_b32 v6, 4, v1")
    a("v_xor_b32 v7, v5, v6")
    a("v_xor_b32 v8, 4, v7")
    a(f"s_lshl_b32 s{sT}, s{sU0}, 4")
    a(f"s_lshl_b32 s{sT+1}, s{sWAVE}, 6")
    a(f"s_add_u32 s{sT}, s{sT}, s{sT+1}")
    a(f"v_add_u32 v9, s{sT}, v4")
    a("v_mul_u32_u24 v9, 1280, v9")
    a("v_lshl_add_u32 v10, v7, 4, v9")
    a("v_lshl_add_u32 v11, v8, 4, v9")
    for ii in range(8):
        src = "v10" if ii % 2 == 0 else "v11"
        a(f"v_add_u32 v{VDX+ii}, {ii*10240 - (ii%4)*1024}, {src}")
    if MU == 15:
        a(f"s_cmp_eq_u32 s{sWAVE}, 3")
        a(f"s_cselect_b32 s{sT}, {BIG}, 0")
        a(f"v_or_b32 v{VDX+6}, s{sT}, v{VDX+6}")
        a(f"v_or_b32 v{VDX+7}, s{sT}, v{VDX+7}")
    a("v_and_b32 v12, 1, v6")
    a("v_lshlrev_b32 v12, 1, v12")
    a("v_xor_b32 v12, v5, v12")
    a("v_xor_b32 v13, 4, v12")
    a(f"s_and_b32 s{sT}, s{sWAVE}, 1")
    a(f"s_lshl_b32 s{sT}, s{sT}, 5")
    a(f"v_add_u32 v14, s{sT}, v4")
    a("v_mul_u32_u24 v14, 3456, v14")
    a(f"s_lshl_b32 s{sT}, s{sL}, 7")
    a(f"v_add_u32 v14, s{sT}, v14")
    a("v_lshl_add_u32 v12, v12, 4, v14")
    a("v_lshl_add_u32 v13, v13, 4, v14")
    for jj in range(4):
        src = "v12" if jj % 2 == 0 else "v13"
        a(f"v_add_u32 v{VDW+jj}, {jj*8*3456 - jj*1024}, {src}")
    a("v_and_b32 v5, 15, v1")
    a("v_lshrrev_b32 v7, 1, v5")
    a("v_xor_b32 v7, v6, v7")
    a("v_lshlrev_b32 v7, 4, v7")
    a(f"v_lshl_add_u32 v{VRX}, v5, 7, v7")
    a(f"v_xor_b32 v{VRX+1}, 64, v{VRX}")
    a(f"v_add_u32 v{VRX+2}, 65536, v{VRX}")
    a(f"v_add_u32 v{VRX+3}, 65536, v{VRX+1}")
    a("v_lshrrev_b32 v7, 2, v5")
    a("v_lshl_add_u32 v8, v6, 3, v7")
    a("v_lshrrev_b32 v9, 1, v7")
    a("v_and_b32 v10, 1, v6")
    a("v_lshl_add_u32 v9, v10, 1, v9")
    a(f"v_xor_b32 v9, s{sWAVE}, v9")
    a("v_lshlrev_b32 v9, 5, v9")
    a("v_lshl_add_u32 v8, v8, 7, v9")
    a("v_and_b32 v9, 3, v1")
    a("v_lshl_add_u32 v8, v9, 3, v8")
    a(f"v_add_u32 v{VRW}, {LDS_W(0)}, v8")
    a("v_and_b32 v7, 1, v6")
    a(f"v_add_u32 v7, s{sU0}, v7")
    a("v_mul_u32_u24 v7, 55296, v7")
    a("v_lshrrev_b32 v8, 1, v6")
    a("v_lshlrev_b32 v8, 8, v8")
    a("v_lshl_add_u32 v8, v5, 4, v8")
    a("v_add_u32 v7, v7, v8")
    a(f"s_lshl_b32 s{sT}, s{sL}, 11")
    a(f"s_lshl_b32 s{sT+1}, s{sWAVE}, 9")
    a(f"s_add_u32 s{sT}, s{sT}, s{sT+1}")
    a(f"v_add_u32 v{VHS}, s{sT}, v7")
    a(f"s_lshl_b32 s{sM0X}, s{sWAVE}, 13")
    a(f"s_lshl_b32 s{sM0W}, s{sWAVE}, 12")
    a("s_waitcnt lgkmcnt(0)")
    stamp(a, cfg, 1)
    srd(a, sX, 4, S_ * D_ * 2)
    a(f"s_cmp_lt_u32 s{sWAVE}, 2")
    a(f"s_cselect_b32 s{sW}, s6, s8")
    a(f"s_cselect_b32 s{sW+1}, s7, s9")
    a(f"s_and_b32 s{sW+1}, s{sW+1}, 0xffff")
    a(f"s_mov_b32 s{sW+2}, {D_*F_*2}")
    a(f"s_mov_b32 s{sW+3}, 0x00020000")

    def dma_group(c):
        slot = c % 3
        g = []
        g.append([f"s_mov_b32 s{sWOFF}, {c*64*3456}", f"s_add_u32 m0, s{sM0W}, {LDS_W(slot)}"])
        g.append([f"s_movk_i32 s{sXOFF}, {c*128}", f"buffer_load_dwordx4 v{VDW}, s[{sW}:{sW+3}], s{sWOFF} offen lds"])
        for jj in range(1, 4):
            g.append([f"buffer_load_dwordx4 v{VDW+jj}, s[{sW}:{sW+3}], s{sWOFF} offen offset:{jj*1024} lds"])
        for half in range(2):
            g.append([f"s_add_u32 m0, s{sM0X}, {LDS_X(slot) + half*4096}"])
            for i4 in range(4):
                ii = half * 4 + i4
                o = f" offset:{i4*1024}" if i4 else ""
                g.append([f"buffer_load_dwordx4 v{VDX+ii}, s[{sX}:{sX+3}], s{sXOFF} offen{o} lds"])
        return g
    for c in range(3):
        for grp in dma_group(c):
            for t in grp:
                a(t)
            if grp[-1].startswith("s_add_u32 m0"):
                a("s_nop 0")
    srd_off(a, sH, 16, H_OFF, H_BYTES)
    if cfg.stamps:
        srd_off(a, sST, 16, ST_OFF, ST_BYTES)

    def xread(n, u):
        c, s = n >> 1, n & 1
        slot = c % 3
        base = VRX + s + (2 if slot == 2 else 0)
        off = (slot % 2 if slot < 2 else 0) * 32768 + u * 2048
        r = xr(n * MU + u)
        return f"ds_read_b128 v[{r}:{r+3}], v{base} offset:{off}"
    def wread(n, mat, h):
        c, s = n >> 1, n & 1
        slot = c % 3
        off = slot * 16384 + mat * 8192 + s * 4096 + h * 512
        r = wf(n, mat) + 2 * h
        return f"ds_read_b64_tr_b16 v[{r}:{r+1}], v{VRW} offset:{off}"

    a("s_waitcnt vmcnt(24)")
    a("s_barrier")
    stamp(a, cfg, 2)
    for mat in range(2):
        for h in range(2):
            a(wread(0, mat, h))
    for u in range(MU):
        a(xread(0, u))

    sc = Sched()
    NST = 20
    for n in range(NST):
        g0 = len(sc.mf)
        c, s = n >> 1, n & 1
        pre = []
        if s == 1 and n + 1 < NST:
            N = 12 if c + 2 <= 9 else 0
            pre = [f"s_waitcnt vmcnt({N}) lgkmcnt(0)", "s_barrier"]
        else:
            pre = ["s_waitcnt lgkmcnt(0)", "s_nop 0"]
        sc.pre[g0] = pre
        for u in range(MU):
            x = xr(n * MU + u)
            for mat, acc in ((0, accg(u)), (1, accu(u))):
                w = wf(n, mat)
                csrc = "0" if n == 0 else f"v[{acc}:{acc+3}]"
                sc.mf.append(f"v_mfma_f32_16x16x32_bf16 v[{acc}:{acc+3}], v[{w}:{w+3}], v[{x}:{x+3}], {csrc}")
        if n + 1 < NST:
            for mat in range(2):
                for h in range(2):
                    sc.fill.append(("lds", g0, [wread(n + 1, mat, h)], 0, g0 + 2 * MU - 1))
            for u in range(MU):
                e = g0 if u < D else g0 + 2 * (u - D) + 1
                sc.fill.append(("lds", e, [xread(n + 1, u)], 0, g0 + 2 * MU - 1))
        if s == 1 and c + 3 <= 9:
            grps = dma_group(c + 3)
            span = 4 * MU - 6
            for i, grp in enumerate(grps):
                e = g0 + 4 + (i * span) // len(grps)
                sc.fill.append(("dma", e, grp, 1, g0 + 4 * MU - 1))
    sc.emit(a, maxper=2)
    stamp(a, cfg, 3)
    a("s_nop 7")
    sc1 = " sc1" if cfg.fused else ""
    npair = (MU + 1) // 2
    for p in range(npair):
        ua, ub = 2 * p, 2 * p + 1
        for u in (ua, ub):
            if u >= MU:
                continue
            for r in range(4):
                a(f"v_mul_f32 v{accg(u)+r}, v{accg(u)+r}, v{accu(u)+r}")
        dst = accu(ua)
        a(f"v_cvt_pk_bf16_f32 v{dst}, v{accg(ua)}, v{accg(ua)+1}")
        a(f"v_cvt_pk_bf16_f32 v{dst+1}, v{accg(ua)+2}, v{accg(ua)+3}")
        if ub < MU:
            a(f"v_cvt_pk_bf16_f32 v{dst+2}, v{accg(ub)}, v{accg(ub)+1}")
            a(f"v_cvt_pk_bf16_f32 v{dst+3}, v{accg(ub)+2}, v{accg(ub)+3}")
        a(f"s_mov_b32 s{sT}, {p*2*55296}")
        a("s_nop 0")
        a(f"v_permlane16_swap_b32 v{dst}, v{dst+2}")
        a(f"v_permlane16_swap_b32 v{dst+1}, v{dst+3}")
        if ub >= MU:
            a("s_mov_b32 exec_lo, 0x0000ffff")
            a("s_mov_b32 exec_hi, 0x0000ffff")
        a(f"buffer_store_dwordx4 v[{dst}:{dst+3}], v{VHS}, s[{sH}:{sH+3}], s{sT} offen{sc1}")
        if ub >= MU:
            a("s_mov_b64 exec, -1")
    stamp(a, cfg, 4)

def spare(a, cfg):
    t0, t1, t2, t4 = sT+4, sT+5, sT+6, sT+8
    if cfg.MU == 15:
        cnt = [32, 31, 32, 31, 32, 31, 27, 27]
    else:
        cnt = [28, 28, 28, 28, 28, 28, 24, 24]
    cum, acc = [], 0
    for c in cnt:
        cum.append(acc); acc += 32 - c
    assert acc == cfg.NS
    a(f"s_and_b32 s{t0}, s2, 7")
    a(f"s_sub_u32 s{t1}, s{t1}, s{t4}")
    a(f"s_mov_b32 s{t2}, 0")
    for x in range(1, 8):
        if cum[x] != cum[x-1]:
            a(f"s_cmp_ge_u32 s{t0}, {x}")
            a(f"s_cselect_b32 s{t2}, {cum[x]}, s{t2}")
    a(f"s_add_u32 s{t1}, s{t1}, s{t2}")
    sSP = sRB
    a(f"s_mov_b32 s{sSP}, s{t1}")
    NW = 4 * cfg.NS
    T = (540 + NW - 1) // NW
    sGW = sL
    a(f"s_lshl_b32 s{sGW}, s{sSP}, 2")
    a(f"s_add_u32 s{sGW}, s{sGW}, s{sWAVE}")
    a("v_lshrrev_b32 v4, 3, v1")
    a("v_and_b32 v5, 7, v1")
    a("v_lshrrev_b32 v6, 4, v1")
    a("v_and_b32 v12, 1, v6")
    a("v_lshlrev_b32 v12, 1, v12")
    a("v_xor_b32 v12, v5, v12")
    a("v_xor_b32 v13, 4, v12")
    a("v_mul_u32_u24 v14, 1280, v4")
    a("v_lshl_add_u32 v12, v12, 4, v14")
    a("v_lshl_add_u32 v13, v13, 4, v14")
    for jj in range(4):
        src = "v12" if jj % 2 == 0 else "v13"
        a(f"v_add_u32 v{16+jj}, {jj*8*1280 - jj*1024}, {src}")
    a("v_and_b32 v5, 15, v1")
    a("v_lshrrev_b32 v7, 2, v5")
    a("v_lshl_add_u32 v8, v6, 3, v7")
    a("v_lshrrev_b32 v9, 1, v7")
    a("v_and_b32 v10, 1, v6")
    a("v_lshl_add_u32 v9, v10, 1, v9")
    a("v_and_b32 v10, 3, v1")
    a("v_lshlrev_b32 v10, 3, v10")
    a("v_lshl_add_u32 v8, v8, 7, v10")
    WB = 36864
    a(f"s_mul_i32 s{sM0W}, s{sWAVE}, {WB}")
    a(f"v_add_u32 v8, s{sM0W}, v8")
    for q in range(4):
        a(f"v_xor_b32 v10, {q}, v9")
        a(f"v_lshl_add_u32 v{20+q}, v10, 5, v8")
    a("v_lshlrev_b32 v24, 4, v1")
    a("s_waitcnt lgkmcnt(0)")
    srd(a, sWDS, 10, F_ * D_ * 2)
    srd_off(a, sWD, 16, WD_OFF, WD_BYTES)
    if cfg.stamps:
        srd_off(a, sST, 16, ST_OFF, ST_BYTES)
    sc1 = " sc1" if cfg.fused else ""
    NSLOT = 9
    def tile_scalars(i):
        a(f"s_add_u32 s{sT+2}, s{sGW}, {i*NW}")
        a(f"s_mul_i32 s{sT}, s{sT+2}, 6554")
        a(f"s_lshr_b32 s{sT}, s{sT}, 16")
        a(f"s_mul_i32 s{sT+1}, s{sT}, 10")
        a(f"s_sub_u32 s{sT+1}, s{sT+2}, s{sT+1}")
    def issue(i):
        tile_scalars(i)
        a(f"s_mul_i32 s{sT+3}, s{sT}, {32*1280}")
        a(f"s_lshl_b32 s{sT+1}, s{sT+1}, 7")
        a(f"s_add_u32 s{sT+3}, s{sT+3}, s{sT+1}")
        a(f"s_add_u32 m0, s{sM0W}, {(i % NSLOT)*4096}")
        a("s_nop 0")
        for jj in range(4):
            o = f" offset:{jj*1024}" if jj else ""
            a(f"buffer_load_dwordx4 v{16+jj}, s[{sWDS}:{sWDS+3}], s{sT+3} offen{o} lds")
    def process(i):
        base = 32 + (i % 2) * 16
        for q in range(4):
            for h in range(2):
                r = base + 4 * q + 2 * h
                a(f"ds_read_b64_tr_b16 v[{r}:{r+1}], v{20+q} offset:{(i % NSLOT)*4096 + h*512}")
        tile_scalars(i)
        a(f"s_cmp_ge_u32 s{sT}, 54")
        a(f"s_cselect_b32 s{sT+4}, {BIG}, 0")
        a(f"s_mul_i32 s{sT}, s{sT}, 5")
        a(f"s_lshl_b32 s{sT+1}, s{sT+1}, 2")
        a("s_waitcnt lgkmcnt(0)")
        for q in range(4):
            a(f"s_add_u32 s{sT+2}, s{sT+1}, {q}")
            a(f"s_mul_i32 s{sT+3}, s{sT+2}, 52")
            a(f"s_lshr_b32 s{sT+3}, s{sT+3}, 8")
            a(f"s_mul_i32 s{sT+3}, s{sT+3}, 265")
            a(f"s_add_u32 s{sT+3}, s{sT+3}, s{sT+2}")
            a(f"s_add_u32 s{sT+3}, s{sT+3}, s{sT}")
            a(f"s_lshl_b32 s{sT+3}, s{sT+3}, 10")
            a(f"s_or_b32 s{sT+3}, s{sT+3}, s{sT+4}")
            r = base + 4 * q
            a(f"buffer_store_dwordx4 v[{r}:{r+3}], v24, s[{sWD}:{sWD+3}], s{sT+3} offen{sc1}")
    for nu in range(40):
        assert (nu * 52) >> 8 == nu // 5
    i = 0
    while i < T:
        n = min(NSLOT, T - i)
        for j in range(n):
            issue(i + j)
        for j in range(n):
            a(f"s_waitcnt vmcnt({min(63, 4*(n-1-j) + 4*j)})")
            process(i + j)
        i += n
        if i < T:
            a("s_waitcnt vmcnt(0)")
    stamp(a, cfg, 4)

def phase2(a, cfg, standalone):
    ACC = 16
    HR = 96
    NHR = 32
    WV = 224
    VH = 248
    VW = 252
    VO = 253
    acc = lambda mu, nu: ACC + (mu * 5 + nu) * 4
    def wreg(j):
        if j < 64:
            return f"a[{4*j}:{4*j+3}]"
        r = WV + 4 * (j - 64)
        return f"v[{r}:{r+3}]"
    hreg = lambda q: HR + 4 * (q % NHR)
    sRB2, sCB = sRB, sL
    a(f"s_and_b32 s{sT}, s2, 7")
    a(f"s_lshr_b32 s{sT+1}, s2, 3")
    a(f"s_lshr_b32 s{sRB2}, s{sT}, 1")
    a(f"s_lshl_b32 s{sRB2}, s{sRB2}, 3")
    a(f"s_lshr_b32 s{sT+2}, s{sT+1}, 2")
    a(f"s_add_u32 s{sRB2}, s{sRB2}, s{sT+2}")
    a(f"s_and_b32 s{sCB}, s{sT}, 1")
    a(f"s_lshl_b32 s{sCB}, s{sCB}, 2")
    a(f"s_and_b32 s{sT+2}, s{sT+1}, 3")
    a(f"s_add_u32 s{sCB}, s{sCB}, s{sT+2}")
    a(f"s_mul_i32 s{sT}, s{sRB2}, {4*54}")
    a(f"s_mul_i32 s{sT+1}, s{sWAVE}, 14")
    a(f"s_add_u32 s{sT}, s{sT}, s{sT+1}")
    a(f"s_lshl_b32 s{sT}, s{sT}, 10")
    a("v_lshlrev_b32 v4, 4, v1")
    a(f"v_add_u32 v{VH}, s{sT}, v4")
    for mu in range(1, 4):
        a(f"v_add_u32 v{VH+mu}, {mu*55296}, v{VH}")
    a(f"s_mul_i32 s{sT}, s{sCB}, 270")
    a(f"s_mul_i32 s{sT+1}, s{sWAVE}, 70")
    a(f"s_add_u32 s{sT}, s{sT}, s{sT+1}")
    a(f"s_lshl_b32 s{sT}, s{sT}, 10")
    a(f"v_add_u32 v{VW}, s{sT}, v4")
    a("v_and_b32 v5, 15, v1")
    a("v_lshrrev_b32 v6, 4, v1")
    a(f"s_lshl_b32 s{sT}, s{sRB2}, 6")
    a(f"s_lshl_b32 s{sT+1}, s{sWAVE}, 4")
    a(f"s_add_u32 s{sT}, s{sT}, s{sT+1}")
    a(f"v_add_u32 v7, s{sT}, v5")
    a("v_mul_u32_u24 v7, 1280, v7")
    a(f"s_mul_i32 s{sT}, s{sCB}, 160")
    a(f"v_add_u32 v7, s{sT}, v7")
    a("v_and_b32 v8, 1, v6")
    a("v_lshlrev_b32 v8, 5, v8")
    a("v_lshrrev_b32 v9, 1, v6")
    a("v_lshl_add_u32 v8, v9, 4, v8")
    a(f"v_add_u32 v{VO}, v7, v8")
    a(f"v_lshl_add_u32 v{VO+1}, v6, 3, v7")
    sBIGW = sM0X
    a(f"s_cmp_eq_u32 s{sWAVE}, 3")
    a(f"s_cselect_b32 s{sBIGW}, {BIG}, 0")
    if standalone:
        a("s_waitcnt lgkmcnt(0)")
        stamp(a, cfg, 1)
        srd_off(a, sH, 16, H_OFF, H_BYTES)
        srd_off(a, sWD, 16, WD_OFF, WD_BYTES)
        if cfg.stamps:
            srd_off(a, sST, 16, ST_OFF, ST_BYTES)
    srd(a, sOUT, 12, S_ * D_ * 2)
    sc1 = " sc1" if cfg.fused else ""
    sWO, sHO = sWOFF, sXOFF
    def wload(j):
        t = []
        if j % 4 == 0:
            if j >= 60:
                t.append(f"s_or_b32 s{sWO}, s{sBIGW}, {(j//4)*4096}")
            else:
                t.append(f"s_mov_b32 s{sWO}, {(j//4)*4096}")
        o = f" offset:{(j%4)*1024}" if j % 4 else ""
        t.append(f"buffer_load_dwordx4 {wreg(j)}, v{VW}, s[{sWD}:{sWD+3}], s{sWO} offen{o}{sc1}")
        return t
    def hload(i, mu):
        t = []
        if mu == 0 and i % 4 == 0:
            if i >= 12:
                t.append(f"s_or_b32 s{sHO}, s{sBIGW}, {(i//4)*4096}")
            else:
                t.append(f"s_mov_b32 s{sHO}, {(i//4)*4096}")
        o = f" offset:{(i%4)*1024}" if i % 4 else ""
        r = hreg(i * 4 + mu)
        t.append(f"buffer_load_dwordx4 v[{r}:{r+3}], v{VH+mu}, s[{sH}:{sH+3}], s{sHO} offen{o}{sc1}")
        return t
    PD = 6
    NI = 14
    def step_loads(i):
        l = []
        for nu in range(5):
            l.append(wload(i * 5 + nu))
        for mu in range(4):
            l.append(hload(i, mu))
        return l
    for i in range(PD):
        for grp in step_loads(i):
            for t in grp:
                a(t)
    sc = Sched()
    for i in range(NI):
        g0 = len(sc.mf)
        ahead = min(NI - 1, i + PD - 1) - i
        sc.pre[g0] = [f"s_waitcnt vmcnt({9*ahead})", "s_nop 0"]
        for mu in range(4):
            h = hreg(i * 4 + mu)
            for nu in range(5):
                c = acc(mu, nu)
                csrc = "0" if i == 0 else f"v[{c}:{c+3}]"
                sc.mf.append(f"v_mfma_f32_16x16x32_bf16 v[{c}:{c+3}], {wreg(i*5+nu)}, v[{h}:{h+3}], {csrc}")
        if i + PD < NI:
            for k, grp in enumerate(step_loads(i + PD)):
                sc.fill.append(("ld", g0 + 2 * k, grp, 1, g0 + 19))
    if standalone:
        stamp(a, cfg, 2)
    sc.emit(a, maxper=2)
    stamp(a, cfg, 5)
    a("s_nop 7")
    for mu in range(4):
        a(f"s_sub_u32 s{sT}, s{sWAVE}, {mu+1}")
        a(f"s_and_b32 s{sT}, s{sT}, 3")
        a(f"s_mul_i32 s{sT}, s{sT}, 5120")
        a(f"s_add_u32 s{sT}, s{sT}, {mu*4*5120}")
        a(f"v_add_u32 v8, s{sT}, v4")
        for nu in range(5):
            c = acc(mu, nu)
            a(f"ds_write_b128 v8, v[{c}:{c+3}] offset:{nu*1024}")
    a(f"s_mul_i32 s{sT}, s{sWAVE}, {4*5120}")
    a(f"v_add_u32 v8, s{sT}, v4")
    a("s_waitcnt lgkmcnt(0)")
    a("s_barrier")
    for sl in range(4):
        for nu in range(5):
            r = HR + (sl * 5 + nu) * 4
            a(f"ds_read_b128 v[{r}:{r+3}], v8 offset:{sl*5120 + nu*1024}")
    a("s_waitcnt lgkmcnt(0)")
    for nu in range(5):
        for r in range(4):
            b = HR + nu * 4 + r
            a(f"v_add_f32 v{b}, v{b}, v{b+20}")
            a(f"v_add_f32 v{b+40}, v{b+40}, v{b+60}")
            a(f"v_add_f32 v{b}, v{b}, v{b+40}")
    P = ACC
    for nu in range(5):
        b = HR + nu * 4
        a(f"v_cvt_pk_bf16_f32 v{P+2*nu}, v{b}, v{b+1}")
        a(f"v_cvt_pk_bf16_f32 v{P+2*nu+1}, v{b+2}, v{b+3}")
    a("s_nop 1")
    for p in range(2):
        d = P + 4 * p
        a(f"v_permlane16_swap_b32 v{d}, v{d+2}")
        a(f"v_permlane16_swap_b32 v{d+1}, v{d+3}")
    for p in range(2):
        d = P + 4 * p
        o = f" offset:{p*64}" if p else ""
        a(f"buffer_store_dwordx4 v[{d}:{d+3}], v{VO}, s[{sOUT}:{sOUT+3}], 0 offen{o}")
    a(f"buffer_store_dwordx2 v[{P+8}:{P+9}], v{VO+1}, s[{sOUT}:{sOUT+3}], 0 offen offset:128")
    stamp(a, cfg, 6)

def gen_split(cfg):
    K1, K2 = "glu_p1_kernel", "glu_p2_kernel"
    out = kernel_header([
        f"; @launch kernel={K1} grid=(256,1,1) block=(256,1,1) lds={LDS_TOTAL}",
        f"; @launch kernel={K2} grid=(256,1,1) block=(256,1,1) lds=81920"])
    a = Asm()
    emit_entry(a, cfg, "L1_end")
    emit_codepf(a, cfg, "L1_end")
    emit_role(a, cfg, "L1_spare")
    phase1(a, cfg)
    a("s_branch L1_fin")
    a.label("L1_spare")
    spare(a, cfg)
    a.label("L1_fin")
    if cfg.stamps:
        a("s_waitcnt vmcnt(0)")
        stamp(a, cfg, 7)
        stamp_rt(a, cfg, 8)
        emit_stamps_out(a, cfg, 0)
    emit_spin(a, cfg)
    a.label("L1_end")
    a("s_endpgm")
    out += kernel_begin(K1) + a.text()
    a = Asm()
    emit_entry(a, cfg, "L2_end")
    emit_codepf(a, cfg, "L2_end")
    phase2(a, cfg, True)
    if cfg.stamps:
        a("s_waitcnt vmcnt(0)")
        stamp(a, cfg, 7)
        stamp_rt(a, cfg, 8)
        emit_stamps_out(a, cfg, 1)
    emit_spin(a, cfg)
    a.label("L2_end")
    a("s_endpgm")
    out += kernel_begin(K2) + a.text()
    out += ".fill 256, 4, 0xbf800000\n"
    out += rodata_begin() + kernel_desc(K1, 512, 102, 256) + ".p2align 6\n" + kernel_desc(K2, 512, 102, 256)
    return out

if __name__ == "__main__":
    import argparse
    ap = argparse.ArgumentParser()
    ap.add_argument("-o", default="out.s")
    ap.add_argument("--mu", type=int, default=15)
    ap.add_argument("--stamps", type=int, default=0)
    ap.add_argument("--codepf", type=int, default=1)
    ap.add_argument("--spin", type=int, default=0)
    args = ap.parse_args()
    cfg = Cfg(MU=args.mu, stamps=bool(args.stamps), codepf=bool(args.codepf), spin=args.spin)
    open(args.o, "w").write(gen_split(cfg))
```

```python
import sys
sys.path.insert(0, "bench")
from asmlib import *

S_, D_, F_ = 2048, 640, 1728
H_OFF, H_BYTES = 0, 128 * 54 * 1024
WD_OFF, WD_BYTES = 0x800000, 8 * 270 * 1024
FL_OFF, FL_BYTES = 0xC00000, 0x4000
WFL = 64 * 128
ST_OFF, ST_BYTES = 0x1000000, 0x100000
BIG = 0x80000000

sX, sW, sH, sWD, sOUT, sFL, sDBG, sWDS, sST = 20, 24, 28, 32, 36, 40, 44, 48, 52
sWAVE, sL, sU0, sRB = 56, 57, 58, 59
sT = 60
sXOFF, sWOFF = 70, 71
sM0X, sM0W = 72, 73
sNONCE, sMYFL, sBIGW = 74, 75, 76
sCNT = 77
SPIN_LIMIT = 400000
sHMASK = 78
sSTAMP = 80
sSPIN = 100

VH, VW, VO, VL16, VPOLL, VWF, VNONCE, VFLAG = 4, 8, 9, 11, 12, 13, 14, 15

LDS_X = lambda slot: slot * 32768
LDS_W = lambda slot: 98304 + slot * 16384
LDS_TOTAL = 147456

class Cfg:
    def __init__(self, **kw):
        self.MU = 15
        self.D = 3
        self.stamps = 0
        self.codepf = 1
        self.spin = 0
        self.B1 = 16
        self.B2 = 12
        self.map2 = 0
        self.pre = 2
        self.__dict__.update(kw)
        self.NRB = 9 if self.MU == 15 else 8
        self.NMAIN = 27 * self.NRB
        self.NS = 256 - self.NMAIN

def stamp(a, cfg, i):
    if cfg.stamps:
        a(f"s_memtime s[{sSTAMP+2*i}:{sSTAMP+2*i+1}]")

def stamp_rt(a, cfg, i):
    if cfg.stamps:
        a(f"s_memrealtime s[{sSTAMP+2*i}:{sSTAMP+2*i+1}]")

def emit_stamps_out(a, cfg, n=10):
    if not cfg.stamps:
        return
    a("s_waitcnt lgkmcnt(0)")
    a(f"s_lshl_b32 s{sT}, s2, 2")
    a(f"s_add_u32 s{sT}, s{sT}, s{sWAVE}")
    a(f"s_lshl_b32 s{sT}, s{sT}, 6")
    a("v_mbcnt_lo_u32_b32 v1, -1, 0")
    a("v_mbcnt_hi_u32_b32 v1, -1, v1")
    a("v_mov_b32 v2, 0")
    for i in range(n):
        a(f"v_cmp_eq_u32 vcc, {i}, v1")
        a(f"v_mov_b32 v3, s{sSTAMP+2*i}")
        a("s_nop 1")
        a("v_cndmask_b32 v2, v2, v3, vcc")
    a("v_lshlrev_b32 v1, 2, v1")
    a("v_cmp_gt_u32 vcc, 64, v1")
    a(f"s_and_saveexec_b64 s[{sT+2}:{sT+3}], vcc")
    a(f"buffer_store_dword v2, v1, s[{sST}:{sST+3}], s{sT} offen")
    a(f"s_mov_b64 exec, s[{sT+2}:{sT+3}]")

def srd_off(a, d, b, off, nbytes):
    a(f"s_add_u32 s{d}, s{b}, {off}")
    a(f"s_addc_u32 s{d+1}, s{b+1}, 0")
    a(f"s_and_b32 s{d+1}, s{d+1}, 0xffff")
    a(f"s_mov_b32 s{d+2}, {nbytes}")
    a(f"s_mov_b32 s{d+3}, 0x00020000")

def emit_spin(a, cfg):
    if not cfg.spin:
        return
    a("s_waitcnt vmcnt(0)")
    a.label("L_spin")
    a(f"s_memrealtime s[{sT}:{sT+1}]")
    a("s_waitcnt lgkmcnt(0)")
    a(f"s_sub_u32 s{sT}, s{sT}, s{sSPIN}")
    a(f"s_cmp_lt_u32 s{sT}, {cfg.spin*100}")
    a("s_cbranch_scc1 L_spin")

def emit_entry(a, cfg, endlabel):
    if cfg.spin:
        a(f"s_memrealtime s[{sSPIN}:{sSPIN+1}]")
    stamp(a, cfg, 0)
    stamp_rt(a, cfg, 9)
    a("s_cmp_ge_u32 s2, 256")
    a(f"s_cbranch_scc1 {endlabel}")
    a("s_load_dwordx8 s[4:11], s[0:1], 0")
    a("s_load_dwordx4 s[12:15], s[0:1], 32")
    a("s_load_dwordx2 s[16:17], s[0:1], 48")
    a("v_lshrrev_b32 v2, 6, v0")
    a("v_and_b32 v1, 63, v0")
    a(f"v_readfirstlane_b32 s{sWAVE}, v2")

def emit_codepf(a, cfg, endlabel):
    if not cfg.codepf:
        return
    a(f"s_getpc_b64 s[{sT}:{sT+1}]")
    a.label("L_pc")
    a("v_lshlrev_b32 v3, 7, v0")
    a(f"v_cmp_gt_u32 vcc, {endlabel}-L_pc, v3")
    a(f"s_and_saveexec_b64 s[{sT+2}:{sT+3}], vcc")
    a(f"s_cbranch_execz L_pfskip")
    a(f"global_load_dword v3, v3, s[{sT}:{sT+1}]")
    a.label("L_pfskip")
    a(f"s_mov_b64 exec, s[{sT+2}:{sT+3}]")

def emit_role(a, cfg, sparelabel):
    t0, t1, t2, t3, t4 = sT+4, sT+5, sT+6, sT+7, sT+8
    a(f"s_and_b32 s{t0}, s2, 7")
    a(f"s_lshr_b32 s{t1}, s2, 3")
    a(f"s_lshr_b32 s{t2}, s{t0}, 1")
    a(f"s_and_b32 s{t0}, s{t0}, 1")
    if cfg.MU == 15:
        first7, n7, first6, n6 = 32, 63, 27, 54
    else:
        first7, n7, first6, n6 = 28, 56, 24, 48
    a(f"s_cmp_lt_u32 s{t2}, 3")
    a(f"s_cselect_b32 s{t3}, {first7}, {first6}")
    a(f"s_cselect_b32 s{t4}, {n7-first7}, {n6-first6}")
    a(f"s_cselect_b32 s{sRB}, 37, 43")
    a(f"s_cselect_b32 s{sL}, 7, 6")
    a(f"s_cmp_eq_u32 s{t0}, 0")
    a(f"s_cselect_b32 s{t4}, s{t3}, s{t4}")
    a(f"s_cselect_b32 s{t3}, 0, s{t3}")
    a(f"s_cmp_ge_u32 s{t1}, s{t4}")
    a(f"s_cbranch_scc1 {sparelabel}")
    a(f"s_add_u32 s{t1}, s{t1}, s{t3}")
    a(f"s_mul_i32 s{sRB}, s{sRB}, s{t1}")
    a(f"s_lshr_b32 s{sRB}, s{sRB}, 8")
    a(f"s_mul_i32 s{sL}, s{sL}, s{sRB}")
    a(f"s_sub_u32 s{sL}, s{t1}, s{sL}")
    a(f"s_lshl_b32 s{sMYFL}, s{sRB}, 2")
    a(f"s_add_u32 s{sMYFL}, s{sMYFL}, s{t2}")
    a(f"s_lshl_b32 s{sMYFL}, s{sMYFL}, 5")
    a(f"s_add_u32 s{sMYFL}, s{sMYFL}, s{sL}")
    a(f"s_lshl_b32 s{sMYFL}, s{sMYFL}, 2")
    a(f"s_mul_i32 s{t2}, s{t2}, 7")
    a(f"s_add_u32 s{sL}, s{sL}, s{t2}")
    if cfg.MU == 15:
        a(f"s_mul_i32 s{sU0}, s{sRB}, 113")
        a(f"s_lshr_b32 s{sU0}, s{sU0}, 3")
    else:
        a(f"s_lshl_b32 s{sU0}, s{sRB}, 4")

class Sched:
    def __init__(self):
        self.mf = []
        self.pre = {}
        self.fill = []
    def emit(self, a, maxper=2):
        n = len(self.mf)
        gaps = [[] for _ in range(n)]
        load = [0] * n
        queues = {}
        for (q, e, txt, step, dl) in self.fill:
            queues.setdefault(q, []).append((e, txt, step, dl))
        for q, lst in queues.items():
            pos = 0
            for (e, txt, step, dl) in lst:
                p = max(pos, e)
                while p < n - 1 and load[p] + len(txt) > max(maxper, len(txt)):
                    p += 1
                assert p <= dl and p < n, (q, e, txt, p, dl)
                gaps[p].extend(txt)
                load[p] += len(txt)
                pos = p + step
        for i in range(n):
            for t in self.pre.get(i, []):
                a(t)
            a(self.mf[i])
            for t in gaps[i]:
                a(t)

def p2_setup(a, cfg, T):
    sRB2, sCB = sT + 4, sT + 5
    a(f"s_and_b32 s{sT}, s2, 7")
    a(f"s_lshr_b32 s{sT+1}, s2, 3")
    if cfg.map2 == 0:
        a(f"s_lshr_b32 s{sRB2}, s{sT}, 1")
        a(f"s_lshl_b32 s{sRB2}, s{sRB2}, 3")
        a(f"s_lshr_b32 s{sT+2}, s{sT+1}, 2")
        a(f"s_add_u32 s{sRB2}, s{sRB2}, s{sT+2}")
        a(f"s_and_b32 s{sCB}, s{sT}, 1")
        a(f"s_lshl_b32 s{sCB}, s{sCB}, 2")
        a(f"s_and_b32 s{sT+2}, s{sT+1}, 3")
        a(f"s_add_u32 s{sCB}, s{sCB}, s{sT+2}")
    else:
        a(f"s_lshl_b32 s{sRB2}, s{sT}, 2")
        a(f"s_lshr_b32 s{sT+2}, s{sT+1}, 3")
        a(f"s_add_u32 s{sRB2}, s{sRB2}, s{sT+2}")
        a(f"s_and_b32 s{sCB}, s{sT+1}, 7")
    a(f"v_lshlrev_b32 v{VL16}, 4, v1")
    a(f"s_mul_i32 s{sT}, s{sRB2}, {4*54}")
    a(f"s_mul_i32 s{sT+1}, s{sWAVE}, 14")
    a(f"s_add_u32 s{sT}, s{sT}, s{sT+1}")
    a(f"s_lshl_b32 s{sT}, s{sT}, 10")
    a(f"v_add_u32 v{VH}, s{sT}, v{VL16}")
    for mu in range(1, 4):
        a(f"v_add_u32 v{VH+mu}, {mu*55296}, v{VH}")
    a(f"s_mul_i32 s{sT}, s{sCB}, 270")
    a(f"s_mul_i32 s{sT+1}, s{sWAVE}, 70")
    a(f"s_add_u32 s{sT}, s{sT}, s{sT+1}")
    a(f"s_lshl_b32 s{sT}, s{sT}, 10")
    a(f"v_add_u32 v{VW}, s{sT}, v{VL16}")
    a(f"v_and_b32 v{T}, 15, v1")
    a(f"v_lshrrev_b32 v{T+1}, 4, v1")
    a(f"s_lshl_b32 s{sT}, s{sRB2}, 6")
    a(f"s_lshl_b32 s{sT+1}, s{sWAVE}, 4")
    a(f"s_add_u32 s{sT}, s{sT}, s{sT+1}")
    a(f"v_add_u32 v{T}, s{sT}, v{T}")
    a(f"v_mul_u32_u24 v{T}, 1280, v{T}")
    a(f"s_mul_i32 s{sT}, s{sCB}, 160")
    a(f"v_add_u32 v{T}, s{sT}, v{T}")
    a(f"v_and_b32 v{T+2}, 1, v{T+1}")
    a(f"v_lshlrev_b32 v{T+2}, 5, v{T+2}")
    a(f"v_lshrrev_b32 v{T+3}, 1, v{T+1}")
    a(f"v_lshl_add_u32 v{T+2}, v{T+3}, 4, v{T+2}")
    a(f"v_add_u32 v{VO}, v{T}, v{T+2}")
    a(f"v_lshl_add_u32 v{VO+1}, v{T+1}, 3, v{T}")
    a(f"s_cmp_eq_u32 s{sWAVE}, 3")
    a(f"s_cselect_b32 s{sBIGW}, {BIG}, 0")
    a(f"s_movk_i32 s{sHMASK+1}, 0x7f7f")
    a(f"s_cselect_b32 s{sHMASK}, 0x3f3f, s{sHMASK+1}")
    a(f"s_mov_b32 s{sCNT}, 0")
    a(f"s_mov_b32 s{sHMASK+1}, 0")
    if cfg.MU == 15:
        def owner(dst, add):
            a(f"s_lshl_b32 s{dst}, s{sRB2}, 5")
            a(f"s_add_u32 s{dst}, s{dst}, {8*add+7}")
            a(f"s_mul_i32 s{dst}, s{dst}, 580")
            a(f"s_lshr_b32 s{dst}, s{dst}, 16")
            a(f"s_min_u32 s{dst}, s{dst}, 8")
        owner(sT, 0); owner(sT + 1, 3)
    else:
        a(f"s_lshr_b32 s{sT}, s{sRB2}, 2")
        a(f"s_mov_b32 s{sT+1}, s{sT}")
    for k in range(2):
        a(f"s_lshl_b32 s{sT+k}, s{sT+k}, 2")
        a(f"s_add_u32 s{sT+k}, s{sT+k}, s{sWAVE}")
        a(f"s_lshl_b32 s{sT+k}, s{sT+k}, 7")
    a(f"v_mov_b32 v{T}, s{sT}")
    a(f"v_mov_b32 v{T+1}, s{sT+1}")
    a("v_cmp_gt_u32 vcc, 8, v1")
    a(f"v_and_b32 v{T+2}, 7, v1")
    a(f"v_lshlrev_b32 v{VWF}, 2, v1")
    a(f"v_cndmask_b32 v{T}, v{T+1}, v{T}, vcc")
    a(f"v_lshl_add_u32 v{VPOLL}, v{T+2}, 2, v{T}")
    a(f"v_add_u32 v{VWF}, {WFL}, v{VWF}")
    srd_off(a, sH, 16, H_OFF, H_BYTES)
    srd_off(a, sWD, 16, WD_OFF, WD_BYTES)
    srd_off(a, sFL, 16, FL_OFF, FL_BYTES)
    srd(a, sDBG, 14, 256)
    srd(a, sOUT, 12, S_ * D_ * 2)
    if cfg.stamps:
        srd_off(a, sST, 16, ST_OFF, ST_BYTES)

def bound(a, out):
    a(f"s_add_u32 s{sCNT}, s{sCNT}, 1")
    a(f"s_cmp_gt_u32 s{sCNT}, {SPIN_LIMIT}")
    a(f"s_cbranch_scc1 {out}")

def wd_check_loads(cfg):
    return [f"buffer_load_dword v{VNONCE}, off, s[{sDBG}:{sDBG+3}], 0 sc1",
            f"buffer_load_dword v{VFLAG}, v{VWF}, s[{sFL}:{sFL+3}], 0 offen sc1"]

def wd_check(a, cfg, faillabel):
    a(f"v_readfirstlane_b32 s{sNONCE}, v{VNONCE}")
    a(f"v_cmp_ne_u32 vcc, v{VNONCE}, v{VFLAG}")
    m = (1 << cfg.NS) - 1
    a(f"s_and_b32 vcc_lo, vcc_lo, {m & 0xffffffff}")
    a(f"s_and_b32 vcc_hi, vcc_hi, {m >> 32}")
    a(f"s_or_b32 s{sT}, vcc_lo, vcc_hi")
    a(f"s_cbranch_scc1 {faillabel}")
    a(f"s_cmp_eq_u32 s{sNONCE}, 0")
    a(f"s_cbranch_scc1 {faillabel}")

def phase1(a, cfg):
    MU, D = cfg.MU, cfg.D
    R = MU + D
    ACC = 16
    XR = ACC + 8 * MU
    WF = XR + 4 * R
    VDX = WF + 16
    VDW = VDX + 8
    VRX = VDW + 4
    VRW = VRX + 4
    VHS = VRW + 1
    assert VHS < 256, VHS
    accg = lambda u: ACC + 8 * u
    accu = lambda u: ACC + 8 * u + 4
    xr = lambda q: XR + 4 * (q % R)
    wf = lambda n, mat: WF + 8 * (n & 1) + 4 * mat
    a("v_lshrrev_b32 v4, 3, v1")
    a("v_and_b32 v5, 7, v1")
    a("v_lshrrev_b32 v6, 4, v1")
    a("v_xor_b32 v7, v5, v6")
    a("v_xor_b32 v8, 4, v7")
    a(f"s_lshl_b32 s{sT}, s{sU0}, 4")
    a(f"s_lshl_b32 s{sT+1}, s{sWAVE}, 6")
    a(f"s_add_u32 s{sT}, s{sT}, s{sT+1}")
    a(f"v_add_u32 v9, s{sT}, v4")
    a("v_mul_u32_u24 v9, 1280, v9")
    a("v_lshl_add_u32 v10, v7, 4, v9")
    a("v_lshl_add_u32 v11, v8, 4, v9")
    for ii in range(8):
        src = "v10" if ii % 2 == 0 else "v11"
        a(f"v_add_u32 v{VDX+ii}, {ii*10240 - (ii%4)*1024}, {src}")
    if MU == 15:
        a(f"s_cmp_eq_u32 s{sWAVE}, 3")
        a(f"s_cselect_b32 s{sT}, {BIG}, 0")
        a(f"v_or_b32 v{VDX+6}, s{sT}, v{VDX+6}")
        a(f"v_or_b32 v{VDX+7}, s{sT}, v{VDX+7}")
    a("v_and_b32 v12, 1, v6")
    a("v_lshlrev_b32 v12, 1, v12")
    a("v_xor_b32 v12, v5, v12")
    a("v_xor_b32 v13, 4, v12")
    a(f"s_and_b32 s{sT}, s{sWAVE}, 1")
    a(f"s_lshl_b32 s{sT}, s{sT}, 5")
    a(f"v_add_u32 v14, s{sT}, v4")
    a("v_mul_u32_u24 v14, 3456, v14")
    a(f"s_lshl_b32 s{sT}, s{sL}, 7")
    a(f"v_add_u32 v14, s{sT}, v14")
    a("v_lshl_add_u32 v12, v12, 4, v14")
    a("v_lshl_add_u32 v13, v13, 4, v14")
    for jj in range(4):
        src = "v12" if jj % 2 == 0 else "v13"
        a(f"v_add_u32 v{VDW+jj}, {jj*8*3456 - jj*1024}, {src}")
    a(f"s_lshl_b32 s{sM0X}, s{sWAVE}, 13")
    a(f"s_lshl_b32 s{sM0W}, s{sWAVE}, 12")
    a("s_waitcnt lgkmcnt(0)")
    stamp(a, cfg, 1)
    srd(a, sX, 4, S_ * D_ * 2)
    a(f"s_cmp_lt_u32 s{sWAVE}, 2")
    a(f"s_cselect_b32 s{sW}, s6, s8")
    a(f"s_cselect_b32 s{sW+1}, s7, s9")
    a(f"s_and_b32 s{sW+1}, s{sW+1}, 0xffff")
    a(f"s_mov_b32 s{sW+2}, {D_*F_*2}")
    a(f"s_mov_b32 s{sW+3}, 0x00020000")

    def dma_group(c):
        slot = c % 3
        g = []
        g.append([f"s_mov_b32 s{sWOFF}, {c*64*3456}", f"s_add_u32 m0, s{sM0W}, {LDS_W(slot)}"])
        g.append([f"s_movk_i32 s{sXOFF}, {c*128}", f"buffer_load_dwordx4 v{VDW}, s[{sW}:{sW+3}], s{sWOFF} offen lds"])
        for jj in range(1, 4):
            g.append([f"buffer_load_dwordx4 v{VDW+jj}, s[{sW}:{sW+3}], s{sWOFF} offen offset:{jj*1024} lds"])
        for half in range(2):
            g.append([f"s_add_u32 m0, s{sM0X}, {LDS_X(slot) + half*4096}"])
            for i4 in range(4):
                ii = half * 4 + i4
                o = f" offset:{i4*1024}" if i4 else ""
                g.append([f"buffer_load_dwordx4 v{VDX+ii}, s[{sX}:{sX+3}], s{sXOFF} offen{o} lds"])
        return g
    def dma_now(c):
        for grp in dma_group(c):
            for t in grp:
                a(t)
            if grp[-1].startswith("s_add_u32 m0"):
                a("s_nop 0")
    dma_now(0)
    a("v_and_b32 v5, 15, v1")
    a("v_lshrrev_b32 v7, 1, v5")
    a("v_xor_b32 v7, v6, v7")
    a("v_lshlrev_b32 v7, 4, v7")
    a(f"v_lshl_add_u32 v{VRX}, v5, 7, v7")
    a(f"v_xor_b32 v{VRX+1}, 64, v{VRX}")
    a(f"v_add_u32 v{VRX+2}, 65536, v{VRX}")
    a(f"v_add_u32 v{VRX+3}, 65536, v{VRX+1}")
    a("v_lshrrev_b32 v7, 2, v5")
    a("v_lshl_add_u32 v8, v6, 3, v7")
    a("v_lshrrev_b32 v9, 1, v7")
    a("v_and_b32 v10, 1, v6")
    a("v_lshl_add_u32 v9, v10, 1, v9")
    a(f"v_xor_b32 v9, s{sWAVE}, v9")
    a("v_lshlrev_b32 v9, 5, v9")
    a("v_lshl_add_u32 v8, v8, 7, v9")
    a("v_and_b32 v9, 3, v1")
    a("v_lshl_add_u32 v8, v9, 3, v8")
    a(f"v_add_u32 v{VRW}, {LDS_W(0)}, v8")
    a("v_and_b32 v7, 1, v6")
    a(f"v_add_u32 v7, s{sU0}, v7")
    a("v_mul_u32_u24 v7, 55296, v7")
    a("v_lshrrev_b32 v8, 1, v6")
    a("v_lshlrev_b32 v8, 8, v8")
    a("v_lshl_add_u32 v8, v5, 4, v8")
    a("v_add_u32 v7, v7, v8")
    a(f"s_lshl_b32 s{sT}, s{sL}, 11")
    a(f"s_lshl_b32 s{sT+1}, s{sWAVE}, 9")
    a(f"s_add_u32 s{sT}, s{sT}, s{sT+1}")
    a(f"v_add_u32 v{VHS}, s{sT}, v7")
    p2_setup(a, cfg, 16)
    for c in range(1, cfg.pre):
        dma_now(c)

    def xread(n, u):
        c, s = n >> 1, n & 1
        slot = c % 3
        base = VRX + s + (2 if slot == 2 else 0)
        off = (slot % 2 if slot < 2 else 0) * 32768 + u * 2048
        r = xr(n * MU + u)
        return f"ds_read_b128 v[{r}:{r+3}], v{base} offset:{off}"
    def wread(n, mat, h):
        c, s = n >> 1, n & 1
        slot = c % 3
        off = slot * 16384 + mat * 8192 + s * 4096 + h * 512
        r = wf(n, mat) + 2 * h
        return f"ds_read_b64_tr_b16 v[{r}:{r+1}], v{VRW} offset:{off}"

    a(f"s_waitcnt vmcnt({12*(cfg.pre-1)})")
    a("s_barrier")
    stamp(a, cfg, 2)
    for mat in range(2):
        for h in range(2):
            a(wread(0, mat, h))
    for u in range(MU):
        a(xread(0, u))

    sc = Sched()
    NST = 20
    for n in range(NST):
        g0 = len(sc.mf)
        c, s = n >> 1, n & 1
        if s == 1 and n + 1 < NST:
            N = 12 if c + 2 <= 9 else 0
            pre = [f"s_waitcnt vmcnt({N}) lgkmcnt(0)", "s_barrier"]
        else:
            pre = ["s_waitcnt lgkmcnt(0)", "s_nop 0"]
        sc.pre[g0] = pre
        for u in range(MU):
            x = xr(n * MU + u)
            for mat, acc in ((0, accg(u)), (1, accu(u))):
                w = wf(n, mat)
                csrc = "0" if n == 0 else f"v[{acc}:{acc+3}]"
                sc.mf.append(f"v_mfma_f32_16x16x32_bf16 v[{acc}:{acc+3}], v[{w}:{w+3}], v[{x}:{x+3}], {csrc}")
        if n + 1 < NST:
            for mat in range(2):
                for h in range(2):
                    sc.fill.append(("lds", g0, [wread(n + 1, mat, h)], 0, g0 + 2 * MU - 1))
            for u in range(MU):
                e = g0 if u < D else g0 + 2 * (u - D) + 1
                sc.fill.append(("lds", e, [xread(n + 1, u)], 0, g0 + 2 * MU - 1))
        if n == 0 and cfg.pre < 3:
            assert cfg.pre == 2
            grps = dma_group(2)
            for i, grp in enumerate(grps):
                sc.fill.append(("dma", g0 + 4 + (i * (2 * MU - 8)) // len(grps), grp, 1, g0 + 2 * MU - 1))
        if s == 1 and c + 3 <= 9:
            grps = dma_group(c + 3)
            span = 4 * MU - 6
            for i, grp in enumerate(grps):
                sc.fill.append(("dma", g0 + 4 + (i * span) // len(grps), grp, 1, g0 + 4 * MU - 1))
        if n == 18:
            for t in wd_check_loads(cfg):
                sc.fill.append(("dma", g0 + 8, [t], 1, g0 + 2 * MU - 1))
    sc.emit(a, maxper=2)
    stamp(a, cfg, 3)
    a("s_nop 7")
    npair = (MU + 1) // 2
    for p in range(npair):
        ua, ub = 2 * p, 2 * p + 1
        for u in (ua, ub):
            if u >= MU:
                continue
            for r in range(4):
                a(f"v_mul_f32 v{accg(u)+r}, v{accg(u)+r}, v{accu(u)+r}")
        dst = accu(ua)
        a(f"v_cvt_pk_bf16_f32 v{dst}, v{accg(ua)}, v{accg(ua)+1}")
        a(f"v_cvt_pk_bf16_f32 v{dst+1}, v{accg(ua)+2}, v{accg(ua)+3}")
        if ub < MU:
            a(f"v_cvt_pk_bf16_f32 v{dst+2}, v{accg(ub)}, v{accg(ub)+1}")
            a(f"v_cvt_pk_bf16_f32 v{dst+3}, v{accg(ub)+2}, v{accg(ub)+3}")
        a(f"s_mov_b32 s{sT}, {p*2*55296}")
        a("s_nop 0")
        a(f"v_permlane16_swap_b32 v{dst}, v{dst+2}")
        a(f"v_permlane16_swap_b32 v{dst+1}, v{dst+3}")
        if ub >= MU:
            a("s_mov_b32 exec_lo, 0x0000ffff")
            a("s_mov_b32 exec_hi, 0x0000ffff")
        a(f"buffer_store_dwordx4 v[{dst}:{dst+3}], v{VHS}, s[{sH}:{sH+3}], s{sT} offen sc1")
        if ub >= MU:
            a("s_mov_b64 exec, -1")
    a(f"s_waitcnt vmcnt({npair})")
    wd_check(a, cfg, "L_p2slow")
    a("s_branch L_p2go")

def spare(a, cfg):
    t0, t1, t2, t4 = sT+4, sT+5, sT+6, sT+8
    if cfg.MU == 15:
        cnt = [32, 31, 32, 31, 32, 31, 27, 27]
    else:
        cnt = [28, 28, 28, 28, 28, 28, 24, 24]
    cum, acc = [], 0
    for c in cnt:
        cum.append(acc); acc += 32 - c
    assert acc == cfg.NS
    a(f"s_and_b32 s{t0}, s2, 7")
    a(f"s_sub_u32 s{t1}, s{t1}, s{t4}")
    a(f"s_mov_b32 s{t2}, 0")
    for x in range(1, 8):
        if cum[x] != cum[x-1]:
            a(f"s_cmp_ge_u32 s{t0}, {x}")
            a(f"s_cselect_b32 s{t2}, {cum[x]}, s{t2}")
    sSP = sRB
    a(f"s_add_u32 s{sSP}, s{t1}, s{t2}")
    NW = 4 * cfg.NS
    T = (540 + NW - 1) // NW
    sGW = sL
    a(f"s_lshl_b32 s{sGW}, s{sSP}, 2")
    a(f"s_add_u32 s{sMYFL}, s{sGW}, {WFL}")
    a(f"s_add_u32 s{sGW}, s{sGW}, s{sWAVE}")
    a("v_lshrrev_b32 v4, 3, v1")
    a("v_and_b32 v5, 7, v1")
    a("v_lshrrev_b32 v6, 4, v1")
    a("v_and_b32 v12, 1, v6")
    a("v_lshlrev_b32 v12, 1, v12")
    a("v_xor_b32 v12, v5, v12")
    a("v_xor_b32 v13, 4, v12")
    a("v_mul_u32_u24 v14, 1280, v4")
    a("v_lshl_add_u32 v12, v12, 4, v14")
    a("v_lshl_add_u32 v13, v13, 4, v14")
    for jj in range(4):
        src = "v12" if jj % 2 == 0 else "v13"
        a(f"v_add_u32 v{16+jj}, {jj*8*1280 - jj*1024}, {src}")
    a("v_and_b32 v5, 15, v1")
    a("v_lshrrev_b32 v7, 2, v5")
    a("v_lshl_add_u32 v8, v6, 3, v7")
    a("v_lshrrev_b32 v9, 1, v7")
    a("v_and_b32 v10, 1, v6")
    a("v_lshl_add_u32 v9, v10, 1, v9")
    a("v_and_b32 v10, 3, v1")
    a("v_lshlrev_b32 v10, 3, v10")
    a("v_lshl_add_u32 v8, v8, 7, v10")
    WB = 36864
    a(f"s_mul_i32 s{sM0W}, s{sWAVE}, {WB}")
    a(f"v_add_u32 v8, s{sM0W}, v8")
    for q in range(4):
        a(f"v_xor_b32 v10, {q}, v9")
        a(f"v_lshl_add_u32 v{20+q}, v10, 5, v8")
    a("s_waitcnt lgkmcnt(0)")
    stamp(a, cfg, 1)
    srd(a, sWDS, 10, F_ * D_ * 2)
    p2_setup(a, cfg, 24)
    a(f"s_cmp_lg_u32 s{sGW}, 0")
    a("s_cbranch_scc1 L_nononce")
    a(f"s_memrealtime s[{sT}:{sT+1}]")
    a("s_waitcnt lgkmcnt(0)")
    a(f"s_or_b32 s{sT+2}, s{sT}, 1")
    a(f"v_mov_b32 v24, s{sT+2}")
    a("s_mov_b64 exec, 1")
    a(f"buffer_store_dword v24, off, s[{sDBG}:{sDBG+3}], 0 sc1")
    a("s_mov_b64 exec, -1")
    a.label("L_nononce")
    NSLOT = 9
    def tile_scalars(i):
        a(f"s_add_u32 s{sT+2}, s{sGW}, {i*NW}")
        a(f"s_mul_i32 s{sT}, s{sT+2}, 6554")
        a(f"s_lshr_b32 s{sT}, s{sT}, 16")
        a(f"s_mul_i32 s{sT+1}, s{sT}, 10")
        a(f"s_sub_u32 s{sT+1}, s{sT+2}, s{sT+1}")
    def issue(i):
        tile_scalars(i)
        a(f"s_mul_i32 s{sT+3}, s{sT}, {32*1280}")
        a(f"s_lshl_b32 s{sT+1}, s{sT+1}, 7")
        a(f"s_add_u32 s{sT+3}, s{sT+3}, s{sT+1}")
        a(f"s_add_u32 m0, s{sM0W}, {(i % NSLOT)*4096}")
        a("s_nop 0")
        for jj in range(4):
            o = f" offset:{jj*1024}" if jj else ""
            a(f"buffer_load_dwordx4 v{16+jj}, s[{sWDS}:{sWDS+3}], s{sT+3} offen{o} lds")
    def process(i):
        base = 32 + (i % 2) * 16
        for q in range(4):
            for h in range(2):
                r = base + 4 * q + 2 * h
                a(f"ds_read_b64_tr_b16 v[{r}:{r+1}], v{20+q} offset:{(i % NSLOT)*4096 + h*512}")
        tile_scalars(i)
        a(f"s_cmp_ge_u32 s{sT}, 54")
        a(f"s_cselect_b32 s{sT+4}, {BIG}, 0")
        a(f"s_mul_i32 s{sT}, s{sT}, 5")
        a(f"s_lshl_b32 s{sT+1}, s{sT+1}, 2")
        a("s_waitcnt lgkmcnt(0)")
        for q in range(4):
            a(f"s_add_u32 s{sT+2}, s{sT+1}, {q}")
            a(f"s_mul_i32 s{sT+3}, s{sT+2}, 52")
            a(f"s_lshr_b32 s{sT+3}, s{sT+3}, 8")
            a(f"s_mul_i32 s{sT+3}, s{sT+3}, 265")
            a(f"s_add_u32 s{sT+3}, s{sT+3}, s{sT+2}")
            a(f"s_add_u32 s{sT+3}, s{sT+3}, s{sT}")
            a(f"s_lshl_b32 s{sT+3}, s{sT+3}, 10")
            a(f"s_or_b32 s{sT+3}, s{sT+3}, s{sT+4}")
            r = base + 4 * q
            a(f"buffer_store_dwordx4 v[{r}:{r+3}], v{VL16}, s[{sWD}:{sWD+3}], s{sT+3} offen sc1")
    i = 0
    while i < T:
        n = min(NSLOT, T - i)
        for j in range(n):
            issue(i + j)
        for j in range(n):
            a(f"s_waitcnt vmcnt({min(63, 4*(n-1))})")
            process(i + j)
        i += n
        if i < T:
            a("s_waitcnt vmcnt(0)")
    stamp(a, cfg, 2)
    a.label("L_sp_nonce")
    bound(a, "L_sp_nonce_out")
    a(f"buffer_load_dword v{VNONCE}, off, s[{sDBG}:{sDBG+3}], 0 sc1")
    a("s_waitcnt vmcnt(0)")
    a(f"v_readfirstlane_b32 s{sNONCE}, v{VNONCE}")
    a(f"s_cmp_eq_u32 s{sNONCE}, 0")
    a("s_cbranch_scc1 L_sp_nonce")
    a.label("L_sp_nonce_out")
    a("s_barrier")
    a(f"s_cmp_lg_u32 s{sWAVE}, 0")
    a("s_cbranch_scc1 L_sp_noflag")
    a("s_mov_b64 exec, 1")
    a(f"buffer_store_dword v{VNONCE}, off, s[{sFL}:{sFL+3}], s{sMYFL} sc1")
    a("s_mov_b64 exec, -1")
    a.label("L_sp_noflag")
    a(f"s_mov_b32 s{sMYFL}, {BIG}")
    stamp(a, cfg, 3)

def phase2(a, cfg):
    ACC = 16
    HR = 96
    NHR = 32
    WV = 224
    acc = lambda mu, nu: ACC + (mu * 5 + nu) * 4
    def wreg(j):
        if j < 64:
            return f"a[{4*j}:{4*j+3}]"
        r = WV + 4 * (j - 64)
        return f"v[{r}:{r+3}]"
    hreg = lambda q: HR + 4 * (q % NHR)
    sWO, sHO = sWOFF, sXOFF
    def wload(j):
        t = []
        if j % 4 == 0:
            if j >= 60:
                t.append(f"s_or_b32 s{sWO}, s{sBIGW}, {(j//4)*4096}")
            else:
                t.append(f"s_mov_b32 s{sWO}, {(j//4)*4096}")
        o = f" offset:{(j%4)*1024}" if j % 4 else ""
        t.append(f"buffer_load_dwordx4 {wreg(j)}, v{VW}, s[{sWD}:{sWD+3}], s{sWO} offen{o} sc1")
        return t
    def hload(i, mu):
        t = []
        if mu == 0 and i % 4 == 0:
            if i >= 12:
                t.append(f"s_or_b32 s{sHO}, s{sBIGW}, {(i//4)*4096}")
            else:
                t.append(f"s_mov_b32 s{sHO}, {(i//4)*4096}")
        o = f" offset:{(i%4)*1024}" if i % 4 else ""
        r = hreg(i * 4 + mu)
        t.append(f"buffer_load_dwordx4 v[{r}:{r+3}], v{VH+mu}, s[{sH}:{sH+3}], s{sHO} offen{o} sc1")
        return t
    a.label("L_p2slow")
    bound(a, "L_p2go")
    for t in wd_check_loads(cfg):
        a(t)
    a("s_waitcnt vmcnt(0)")
    wd_check(a, cfg, "L_p2slow")
    a.label("L_p2go")
    stamp(a, cfg, 4)
    B1, B2 = cfg.B1, cfg.B2
    for j in range(B1):
        for t in wload(j):
            a(t)
    a(f"s_waitcnt vmcnt({B1})")
    a("s_barrier")
    a(f"s_cmp_lg_u32 s{sWAVE}, 0")
    a("s_cbranch_scc1 L_noflag")
    a("s_mov_b64 exec, 1")
    a(f"buffer_store_dword v{VNONCE}, off, s[{sFL}:{sFL+3}], s{sMYFL} sc1")
    a("s_mov_b64 exec, -1")
    a.label("L_noflag")
    stamp(a, cfg, 5)
    for j in range(B1, 70 - B2):
        for t in wload(j):
            a(t)
    a(f"s_mov_b64 exec, s[{sHMASK}:{sHMASK+1}]")
    a(f"buffer_load_dword v{VFLAG}, v{VPOLL}, s[{sFL}:{sFL+3}], 0 offen sc1")
    a("s_mov_b64 exec, -1")
    for j in range(70 - B2, 70):
        for t in wload(j):
            a(t)
    a(f"s_waitcnt vmcnt({B2})")
    a(f"v_cmp_ne_u32 vcc, v{VNONCE}, v{VFLAG}")
    a(f"s_and_b32 s{sT}, vcc_lo, s{sHMASK}")
    a("s_cbranch_scc0 L_hgo")
    a.label("L_hslow")
    bound(a, "L_hgo")
    a(f"s_mov_b64 exec, s[{sHMASK}:{sHMASK+1}]")
    a(f"buffer_load_dword v{VFLAG}, v{VPOLL}, s[{sFL}:{sFL+3}], 0 offen sc1")
    a("s_mov_b64 exec, -1")
    a("s_waitcnt vmcnt(0)")
    a(f"v_cmp_ne_u32 vcc, v{VNONCE}, v{VFLAG}")
    a(f"s_and_b32 s{sT}, vcc_lo, s{sHMASK}")
    a("s_cbranch_scc1 L_hslow")
    a.label("L_hgo")
    stamp(a, cfg, 6)
    PD = 7
    NI = 14
    for i in range(PD):
        for mu in range(4):
            for t in hload(i, mu):
                a(t)
    sc = Sched()
    for i in range(NI):
        g0 = len(sc.mf)
        ahead = min(NI - 1, i + PD - 1) - i
        sc.pre[g0] = [f"s_waitcnt vmcnt({4*ahead})", "s_nop 0"]
        for mu in range(4):
            h = hreg(i * 4 + mu)
            for nu in range(5):
                c = acc(mu, nu)
                csrc = "0" if i == 0 else f"v[{c}:{c+3}]"
                sc.mf.append(f"v_mfma_f32_16x16x32_bf16 v[{c}:{c+3}], {wreg(i*5+nu)}, v[{h}:{h+3}], {csrc}")
        if i + PD < NI:
            for mu in range(4):
                sc.fill.append(("ld", g0 + 4 * mu + 1, hload(i + PD, mu), 1, g0 + 19))
    sc.emit(a, maxper=2)
    stamp(a, cfg, 7)
    a("s_nop 7")
    for mu in range(4):
        a(f"s_sub_u32 s{sT}, s{sWAVE}, {mu+1}")
        a(f"s_and_b32 s{sT}, s{sT}, 3")
        a(f"s_mul_i32 s{sT}, s{sT}, 5120")
        a(f"s_add_u32 s{sT}, s{sT}, {mu*4*5120}")
        a(f"v_add_u32 v2, s{sT}, v{VL16}")
        for nu in range(5):
            c = acc(mu, nu)
            a(f"ds_write_b128 v2, v[{c}:{c+3}] offset:{nu*1024}")
    a(f"s_mul_i32 s{sT}, s{sWAVE}, {4*5120}")
    a(f"v_add_u32 v2, s{sT}, v{VL16}")
    a("s_waitcnt lgkmcnt(0)")
    a("s_barrier")
    for sl in range(4):
        for nu in range(5):
            r = HR + (sl * 5 + nu) * 4
            a(f"ds_read_b128 v[{r}:{r+3}], v2 offset:{sl*5120 + nu*1024}")
    a("s_waitcnt lgkmcnt(0)")
    for nu in range(5):
        for r in range(4):
            b = HR + nu * 4 + r
            a(f"v_add_f32 v{b}, v{b}, v{b+20}")
            a(f"v_add_f32 v{b+40}, v{b+40}, v{b+60}")
            a(f"v_add_f32 v{b}, v{b}, v{b+40}")
    P = ACC
    for nu in range(5):
        b = HR + nu * 4
        a(f"v_cvt_pk_bf16_f32 v{P+2*nu}, v{b}, v{b+1}")
        a(f"v_cvt_pk_bf16_f32 v{P+2*nu+1}, v{b+2}, v{b+3}")
    a("s_nop 1")
    for p in range(2):
        d = P + 4 * p
        a(f"v_permlane16_swap_b32 v{d}, v{d+2}")
        a(f"v_permlane16_swap_b32 v{d+1}, v{d+3}")
    for p in range(2):
        d = P + 4 * p
        o = f" offset:{p*64}" if p else ""
        a(f"buffer_store_dwordx4 v[{d}:{d+3}], v{VO}, s[{sOUT}:{sOUT+3}], 0 offen{o}")
    a(f"buffer_store_dwordx2 v[{P+8}:{P+9}], v{VO+1}, s[{sOUT}:{sOUT+3}], 0 offen offset:128")

def gen(cfg):
    out = kernel_header([f"; @launch grid=(256,1,1) block=(256,1,1) lds={LDS_TOTAL}"])
    a = Asm()
    emit_entry(a, cfg, "L_end")
    emit_codepf(a, cfg, "L_end")
    emit_role(a, cfg, "L_spare")
    phase1(a, cfg)
    a.label("L_spare")
    spare(a, cfg)
    phase2(a, cfg)
    if cfg.stamps:
        a("s_waitcnt vmcnt(0)")
        stamp(a, cfg, 8)
        stamp_rt(a, cfg, 10)
        emit_stamps_out(a, cfg, 11)
    emit_spin(a, cfg)
    a.label("L_end")
    a("s_endpgm")
    out += kernel_begin(KNAME) + a.text()
    out += ".fill 64, 4, 0xbf800000\n"
    out += rodata_begin() + kernel_desc(KNAME, 512, 102, 256)
    return out

if __name__ == "__main__":
    import argparse
    ap = argparse.ArgumentParser()
    ap.add_argument("-o", default="out.s")
    ap.add_argument("opts", nargs="*")
    args = ap.parse_args()
    kw = {}
    for o in args.opts:
        k, v = o.split("=")
        kw[k] = int(v)
    cfg = Cfg(**kw)
    open(args.o, "w").write(gen(cfg))
```

```python
class It:
    __slots__ = ("kind", "text", "tag", "nds", "nvm", "cost")
    def __init__(self, kind, text, tag=None, nds=(), nvm=(), cost=1):
        self.kind = kind
        self.text = text
        self.tag = tag
        self.nds = tuple(nds)
        self.nvm = tuple(nvm)
        self.cost = cost

def I(t, **k): return It("i", t, **k)
def VM(t, tag=None, **k): return It("vm", t, tag, cost=k.pop("cost", 2), **k)
def DS(t, tag=None, **k): return It("ds", t, tag, **k)
def MF(t, **k): return It("mf", t, **k)
def LAB(t): return It("lab", t, cost=0)
def KEEP(k): return It("keep", None, tag=k, cost=0)
def WAIT(nds=(), nvm=(), ds0=False, vm0=False):
    it = It("wait", None, nds=nds, nvm=nvm)
    it.tag = (ds0, vm0)
    return it

class Stream:
    def __init__(self, keep=3):
        self.items = []
        self.keep = keep
    def __call__(self, x):
        if isinstance(x, str):
            x = I(x)
        self.items.append(x)
    def label(self, n):
        self.items.append(LAB(n))
    def setkeep(self, k):
        self.items.append(It("keep", None, tag=k, cost=0))
    def reset(self):
        self.items.append(It("reset", None))
    def resolve(self):
        out = []
        vm_last, ds_last = {}, {}
        nvm = nds = 0
        kvm = kds = 0
        nwait = 0
        for it in self.items:
            if it.kind == "lab":
                out.append(it.text + ":"); continue
            if it.kind == "reset":
                kvm, kds = nvm, nds; continue
            if it.kind == "keep":
                self.keep = it.tag; continue
            wv = wd = None
            rv = max((vm_last[t] for t in it.nvm), default=-1)
            rd = max((ds_last[t] for t in it.nds), default=-1)
            if it.kind == "wait":
                if it.tag[0]: rd = nds - 1
                if it.tag[1]: rv = nvm - 1
            if rv >= kvm:
                wv = min(63, nvm - 1 - rv); kvm = nvm - wv
            if rd >= kds:
                r2 = max(rd, nds - 1 - self.keep) if it.kind != "wait" else rd
                wd = min(15, nds - 1 - r2); kds = nds - wd
            if it.kind == "wait" and it.tag[0]:
                wd = 0
            if it.kind == "wait" and it.tag[1]:
                wv = 0
            if wv is not None or wd is not None:
                s = "s_waitcnt"
                if wv is not None: s += f" vmcnt({wv})"
                if wd is not None: s += f" lgkmcnt({wd})"
                out.append("    " + s); nwait += 1
            if it.kind == "wait":
                continue
            out.append("    " + it.text)
            if it.kind == "vm":
                if it.tag is not None: vm_last[it.tag] = nvm
                nvm += 1
            elif it.kind == "ds":
                if it.tag is not None: ds_last[it.tag] = nds
                nds += 1
        return out

class Sched:
    def __init__(self, cap=2):
        self.mf = []
        self.pre = {}
        self.q = {}
        self.order = []
        self.cap = cap
        self.placed = {}
    def add(self, q, e, dl, items, step=0, name=None):
        if q not in self.q:
            self.q[q] = []; self.order.append(q)
        if not isinstance(items, list): items = [items]
        items = [I(x) if isinstance(x, str) else x for x in items]
        self.q[q].append((e, dl, items, step, name))
    def before(self, g, items):
        items = [I(x) if isinstance(x, str) else x for x in items]
        self.pre.setdefault(g, []).extend(items)
    def emit(self, st, order=None):
        n = len(self.mf)
        gaps = [[] for _ in range(n)]
        load = [0] * n
        left = []
        for q in (order or self.order):
            pos = 0
            for (e, dl, items, step, name) in self.q[q]:
                if callable(e): e = e(self.placed)
                c = sum(x.cost for x in items)
                p = max(pos, e)
                while p < n and load[p] > 0 and load[p] + c > self.cap:
                    p += 1
                if p >= n:
                    assert dl is None or dl >= n, (q, e, dl, [x.text for x in items])
                    left.append((q, items, step)); pos = n
                    if name: self.placed[name] = n
                    continue
                assert dl is None or p <= dl, (q, e, dl, p, [x.text for x in items])
                gaps[p].extend(items); load[p] += c
                if name: self.placed[name] = p
                pos = p + step
        for i in range(n):
            for x in self.pre.get(i, []): st(x)
            st(self.mf[i])
            for x in gaps[i]: st(x)
        return left
```

```python
import sys
sys.path.insert(0, "bench")
sys.path.insert(0, "gen")
from asmlib import KNAME, kernel_header, kernel_begin, kernel_desc, rodata_begin
from stream import *

S_, D_, F_ = 2048, 640, 1728
H_OFF, H_BYTES = 0, 128 * 54 * 1024
WD_OFF, WD_BYTES = 0x800000, 40 * 54 * 1024
FL_OFF, FL_BYTES = 0xC00000, 0x8000
WFL = 64 * 128
ST_OFF, ST_BYTES = 0x1000000, 0x100000
BIG = 0x80000000
SPIN_LIMIT = 400000
G = 12
NS = 40
SLOT = 40960
LDS_TOTAL = 4 * SLOT
USTR = 54 * 1024

sSOFF = 4
sX, sW, sH, sWD, sOUT, sFL, sDBG, sWDS, sST = 20, 24, 28, 32, 36, 40, 44, 48, 52
sWAVE, sL, sRB, sMYFL = 56, 57, 58, 59
sT = 60
sXOFF, sWOFF, sM0X, sM0W, sM0P = 70, 71, 72, 73, 74
sCNT, sRB2, sCB = 75, 76, 77
sMASK = 78
sSTAMP = 80
sSPIN = 100
sPHI, sSEL = 3, 19
sDX = 48
sPC = 60
sPO = (65, 3)
sHO = (0, 1)
sHS = 18
sOS = 19

VH, VW, VPOLL, VNONCE, VFLAG = 4, 8, 13, 14, 15
ACC1, ACCA = 16, 112
XR = 128
class Cfg:
    def __init__(self, **kw):
        self.D = 3
        self.stamps = 0
        self.codepf = 1
        self.spin = 0
        self.map2 = 0
        self.align = 1
        self.rot = 1
        self.nchk = 12
        self.wd0 = 400
        self.wdp = 4
        self.dmap = 40
        self.b1 = 8
        self.b2 = 8
        self.pd = 10
        self.touch = 1
        self.steps = 0
        self.slp = 2
        self.lead = 1
        self.outpol = ""
        self.__dict__.update(kw)

def setup_regs(cfg):
    global R, VDX, VDW, VDP, VRX, VRW, VHS, VWF, VFLA, VFV, WFREE
    R = G + cfg.D
    VDX = XR + 4 * R
    VDW = VDX + 6
    VDP = VDW + 4
    VRX = VDP + 4
    VRW = VRX + 4
    VHS = VRW + 2
    VWF = VHS + 1
    VFLA = VWF + 1
    VFV = VFLA + 1
    WFREE = (VFV + 1 + 3) // 4 * 4
    assert WFREE <= 212

def stamp(a, cfg, i):
    if cfg.stamps:
        a(f"s_memtime s[{sSTAMP+2*i}:{sSTAMP+2*i+1}]")
def stamp_it(cfg, i):
    return [I(f"s_memtime s[{sSTAMP+2*i}:{sSTAMP+2*i+1}]")] if cfg.stamps else []
def stamp_rt(a, cfg, i):
    if cfg.stamps:
        a(f"s_memrealtime s[{sSTAMP+2*i}:{sSTAMP+2*i+1}]")

def emit_stamps_out(a, cfg, n):
    a("s_waitcnt lgkmcnt(0)")
    a(f"s_lshl_b32 s{sT}, s2, 2")
    a(f"s_add_u32 s{sT}, s{sT}, s{sWAVE}")
    a(f"s_lshl_b32 s{sT}, s{sT}, 6")
    a("v_mov_b32 v2, 0")
    for i in range(n):
        a(f"v_writelane_b32 v2, s{sSTAMP+2*i}, {i}")
    a("v_lshlrev_b32 v3, 2, v1")
    a("v_cmp_gt_u32 vcc, 64, v3")
    a(f"s_and_saveexec_b64 s[{sT+2}:{sT+3}], vcc")
    a(f"buffer_store_dword v2, v3, s[{sST}:{sST+3}], s{sT} offen")
    a(f"s_mov_b64 exec, s[{sT+2}:{sT+3}]")
    if cfg.steps:
        a(f"s_lshl_b32 s{sT}, s{sT}, 2")
        a(f"s_add_u32 s{sT}, s{sT}, 0x40000")
        a(f"buffer_store_dword v0, v3, s[{sST}:{sST+3}], s{sT} offen")

def srd(a, d, b, nbytes):
    a(f"s_mov_b32 s{d}, s{b}")
    a(f"s_and_b32 s{d+1}, s{b+1}, 0xffff")
    a(f"s_mov_b32 s{d+2}, {nbytes}")
    a(f"s_mov_b32 s{d+3}, 0x00020000")
def srd_off(a, d, b, off, nbytes):
    a(f"s_add_u32 s{d}, s{b}, {off}")
    a(f"s_addc_u32 s{d+1}, s{b+1}, 0")
    a(f"s_and_b32 s{d+1}, s{d+1}, 0xffff")
    a(f"s_mov_b32 s{d+2}, {nbytes}")
    a(f"s_mov_b32 s{d+3}, 0x00020000")

def bound(a, out):
    a(f"s_add_u32 s{sCNT}, s{sCNT}, 1")
    a(f"s_cmp_gt_u32 s{sCNT}, {SPIN_LIMIT}")
    a(f"s_cbranch_scc1 {out}")

def entry(a, cfg):
    if cfg.spin:
        a(f"s_memrealtime s[{sSPIN}:{sSPIN+1}]")
    stamp(a, cfg, 0)
    stamp_rt(a, cfg, 9)
    a("s_cmp_ge_u32 s2, 256")
    a("s_cbranch_scc1 L_end")
    a("s_load_dwordx8 s[4:11], s[0:1], 0")
    a("s_load_dwordx4 s[12:15], s[0:1], 32")
    a("s_load_dwordx2 s[16:17], s[0:1], 48")
    a("v_lshrrev_b32 v2, 6, v0")
    a("v_and_b32 v1, 63, v0")
    a(f"v_readfirstlane_b32 s{sWAVE}, v2")
    if cfg.codepf:
        a(f"s_getpc_b64 s[{sT}:{sT+1}]")
        a.label("L_pc")
        a(f"s_lshr_b32 s{sT+2}, s2, 3")
        a(f"s_lshl_b32 s{sT+2}, s{sT+2}, 3")
        a(f"v_add_u32 v3, s{sT+2}, v0")
        a("v_lshlrev_b32 v3, 7, v3")
        a("v_cmp_gt_u32 vcc, L_end-L_pc, v3")
        a(f"v_cmp_gt_u32 s[{sT+2}:{sT+3}], 8, v0")
        a(f"s_and_b64 vcc, vcc, s[{sT+2}:{sT+3}]")
        a(f"s_and_saveexec_b64 s[{sT+2}:{sT+3}], vcc")
        a("s_cbranch_execz L_pfskip")
        a(f"global_load_dword v3, v3, s[{sT}:{sT+1}]")
        a.label("L_pfskip")
        a(f"s_mov_b64 exec, s[{sT+2}:{sT+3}]")
    t0, t1, t2, t4 = sT+4, sT+5, sT+6, sT+8
    a(f"s_and_b32 s{t0}, s2, 1")
    a(f"s_lshr_b32 s{t1}, s2, 3")
    a(f"s_bfe_u32 s{t2}, s2, 0x20001")
    a(f"s_cmp_lt_u32 s{t2}, 3")
    a(f"s_cselect_b32 s{t4}, 28, 24")
    a(f"s_cselect_b32 s{sRB}, 37, 43")
    a(f"s_cselect_b32 s{sL}, 7, 6")
    a(f"s_cmp_ge_u32 s{t1}, s{t4}")
    a("s_cbranch_scc1 L_spare")
    a(f"s_mul_i32 s{sRB}, s{sRB}, s{t1}")
    a(f"s_lshr_b32 s{sRB}, s{sRB}, 8")
    a(f"s_mul_i32 s{sL}, s{sL}, s{sRB}")
    a(f"s_sub_u32 s{sL}, s{t1}, s{sL}")
    a(f"s_lshl_b32 s{t0}, s{t0}, 2")
    a(f"s_add_u32 s{sRB}, s{sRB}, s{t0}")
    a(f"s_lshl_b32 s{sMYFL}, s{sRB}, 2")
    a(f"s_add_u32 s{sMYFL}, s{sMYFL}, s{t2}")
    a(f"s_lshl_b32 s{sMYFL}, s{sMYFL}, 3")
    a(f"s_add_u32 s{sMYFL}, s{sMYFL}, s{sL}")
    a(f"s_lshl_b32 s{sMYFL}, s{sMYFL}, 7")
    a(f"s_add_u32 s{sPHI}, s{sRB}, s{sL}")
    a(f"s_and_b32 s{sPHI}, s{sPHI}, 3")
    a(f"s_and_b32 s{sSEL}, s{sL}, 1")
    a(f"s_cmp_eq_u32 s{sWAVE}, 0")
    a(f"s_cselect_b32 s{sMYFL}, s{sMYFL}, {BIG}")
    a(f"s_mul_i32 s{t2}, s{t2}, 7")
    a(f"s_add_u32 s{sL}, s{sL}, s{t2}")

def p2_setup(a, cfg):
    srd_off(a, sH, 16, H_OFF, H_BYTES)
    srd_off(a, sWD, 16, WD_OFF, WD_BYTES)
    srd_off(a, sFL, 16, FL_OFF, FL_BYTES)
    srd(a, sDBG, 14, 256)
    srd(a, sOUT, 12, S_ * D_ * 2)
    if cfg.stamps:
        srd_off(a, sST, 16, ST_OFF, ST_BYTES)
    a(f"s_mov_b32 s{sCNT}, 0")
    a(f"s_and_b32 s{sT}, s2, 7")
    a(f"s_lshr_b32 s{sT+1}, s2, 3")
    r8, r4 = sT + 2, sT + 3
    if cfg.map2 == 0:
        a(f"s_lshr_b32 s{r8}, s{sT+1}, 2")
        a(f"s_and_b32 s{r4}, s{sT+1}, 3")
        a(f"s_lshr_b32 s{sRB2}, s{sT}, 1")
        a(f"s_lshl_b32 s{sRB2}, s{sRB2}, 3")
        a(f"s_add_u32 s{sRB2}, s{sRB2}, s{r8}")
        a(f"s_and_b32 s{sCB}, s{sT}, 1")
        a(f"s_lshl_b32 s{sCB}, s{sCB}, 2")
        a(f"s_add_u32 s{sCB}, s{sCB}, s{r4}")
    else:
        a(f"s_and_b32 s{r8}, s{sT+1}, 7")
        a(f"s_lshr_b32 s{r4}, s{sT+1}, 3")
        a(f"s_lshl_b32 s{sRB2}, s{sT}, 2")
        a(f"s_add_u32 s{sRB2}, s{sRB2}, s{r4}")
        a(f"s_mov_b32 s{sCB}, s{r8}")
    a(f"s_mul_i32 s{sT}, s{sCB}, 270")
    a(f"s_mul_i32 s{sT+1}, s{sWAVE}, 14")
    a(f"s_add_u32 s{sT}, s{sT}, s{sT+1}")
    a(f"s_lshl_b32 s{sT}, s{sT}, 10")
    a(f"v_lshl_add_u32 v{VW}, v1, 4, s{sT}")
    for nu in range(1, 5):
        a(f"v_add_u32 v{VW+nu}, {nu*USTR}, v{VW}")
    a(f"s_and_b32 s{sT}, s{sRB2}, 0xfc")
    a(f"s_add_u32 s{sT}, s{sT}, s{sWAVE}")
    a(f"s_lshl_b32 s{sT}, s{sT}, 10")
    a(f"v_lshl_add_u32 v{VPOLL}, v1, 7, s{sT}")
    a(f"s_cmp_eq_u32 s{sWAVE}, 3")
    a(f"s_cselect_b32 s{sT}, 6, 7")
    a(f"v_cmp_gt_u32 s[{sMASK}:{sMASK+1}], s{sT}, v1")
    a(f"v_mov_b32 v2, {BIG}")
    a("s_nop 0")
    a(f"v_cndmask_b32 v{VPOLL}, v2, v{VPOLL}, s[{sMASK}:{sMASK+1}]")
    a(f"v_mov_b32 v{VFLA}, {BIG}")
    a(f"v_writelane_b32 v{VFLA}, s{sMYFL}, 0")
    if cfg.rot:
        a(f"s_mul_i32 s{r8}, s{r8}, 7")
        a(f"s_mul_i32 s{r4}, s{r4}, 14")
        a(f"s_add_u32 s{r8}, s{r8}, s{r4}")
        a(f"s_lshr_b32 s{r8}, s{r8}, 2")
        a(f"s_cmp_ge_u32 s{r8}, 14")
        a(f"s_cselect_b32 s{r4}, 14, 0")
        a(f"s_sub_u32 s{r8}, s{r8}, s{r4}")
    else:
        a(f"s_mov_b32 s{r8}, 0")
    a(f"s_cmp_eq_u32 s{sWAVE}, 3")
    a(f"s_cselect_b32 s{sT+4}, 12, 14")
    a(f"s_mov_b32 s{sT+5}, {BIG}")
    for i in range(14):
        a(f"s_lshl_b32 s{sSOFF+i}, s{r8}, 10")
        a(f"s_cmp_ge_u32 s{r8}, s{sT+4}")
        a(f"s_cselect_b32 s{sSOFF+i}, s{sT+5}, s{sSOFF+i}")
        if i < 13:
            a(f"s_add_u32 s{r8}, s{r8}, 1")
            a(f"s_cmp_eq_u32 s{r8}, 14")
            a(f"s_cselect_b32 s{r8}, 0, s{r8}")

def wreg(j):
    nfree = (256 - WFREE) // 4
    nfree = min(nfree, 11)
    base = 256 - 4 * nfree
    if j < 24:
        return "a", 160 + 4 * j
    j -= 24
    if j < nfree:
        return "v", base + 4 * j
    j -= nfree
    if j < 20:
        return "v", 32 + 4 * j
    j -= 20
    if j < 4:
        return "v", ACCA + 4 * j
    j -= 4
    return "v", XR + 4 * j
def rr(t, b, n=4):
    return f"{t}[{b}:{b+n-1}]"
def wload(j):
    t, b = wreg(j)
    i, nu = divmod(j, 5)
    return VM(f"buffer_load_dwordx4 {rr(t,b)}, v{VW+nu}, s[{sWD}:{sWD+3}], s{sSOFF+i} offen sc1", ("wd", j))

def wdchk_loads():
    return [VM(f"buffer_load_dword v{VNONCE}, off, s[{sDBG}:{sDBG+3}], 0 offset:128 sc1", "chk")]
def wdchk_test(fail):
    return [[I(f"v_cmp_eq_u32 vcc, 0, v{VNONCE}", nvm=("chk",))],
            [I(f"s_cbranch_vccnz {fail}")]]

def epi_pair(ra, rb_, soff, tag):
    g = []
    for base in (ra, rb_):
        for r in range(4):
            g.append(([I(f"v_mul_f32 v{base+r}, v{base+r}, v{base+4+r}")], 0))
    d = ra + 4
    g.append(([I(f"v_cvt_pk_bf16_f32 v{d}, v{ra}, v{ra+1}")], 0))
    g.append(([I(f"v_cvt_pk_bf16_f32 v{d+1}, v{ra+2}, v{ra+3}")], 0))
    g.append(([I(f"v_cvt_pk_bf16_f32 v{d+2}, v{rb_}, v{rb_+1}")], 0))
    g.append(([I(f"v_cvt_pk_bf16_f32 v{d+3}, v{rb_+2}, v{rb_+3}")], 0))
    g.append(([I(f"s_mov_b32 s{sHS}, {soff}")], 1))
    g.append(([I(f"v_permlane16_swap_b32 v{d}, v{d+2}")], 0))
    g.append(([I(f"v_permlane16_swap_b32 v{d+1}, v{d+3}")], 0))
    g.append(([VM(f"buffer_store_dwordx4 v[{d}:{d+3}], v{VHS}, s[{sH}:{sH+3}], s{sHS} offen sc1", tag)], 0))
    return g

def phase1(a, cfg):
    D = cfg.D
    xr = lambda q: XR + 4 * (q % R)
    a("v_lshrrev_b32 v4, 3, v1")
    a("v_and_b32 v5, 7, v1")
    a("v_lshrrev_b32 v6, 4, v1")
    a("v_xor_b32 v7, v5, v6")
    a("v_xor_b32 v8, 4, v7")
    a(f"s_lshl_b32 s{sT}, s{sRB}, 8")
    a(f"v_add_u32 v9, s{sT}, v4")
    a("v_mul_u32_u24 v9, 1280, v9")
    a("v_lshl_add_u32 v10, v7, 4, v9")
    a("v_lshl_add_u32 v11, v8, 4, v9")
    a(f"s_mul_i32 s{sT}, s{sWAVE}, {48*1280}")
    a(f"v_add_u32 v12, s{sT}, v10")
    a(f"v_add_u32 v13, s{sT}, v11")
    for ii in range(6):
        src = "v12" if ii % 2 == 0 else "v13"
        a(f"v_add_u32 v{VDX+ii}, {ii*10240 - (ii%3)*1024}, {src}")
    a("v_and_b32 v12, 1, v6")
    a("v_lshlrev_b32 v12, 1, v12")
    a("v_xor_b32 v12, v5, v12")
    a("v_xor_b32 v13, 4, v12")
    a(f"s_and_b32 s{sT}, s{sWAVE}, 1")
    a(f"s_lshl_b32 s{sT}, s{sT}, 5")
    a(f"v_add_u32 v14, s{sT}, v4")
    a("v_mul_u32_u24 v14, 3456, v14")
    a(f"s_lshl_b32 s{sT}, s{sL}, 7")
    a(f"v_add_u32 v14, s{sT}, v14")
    a("v_lshl_add_u32 v12, v12, 4, v14")
    a("v_lshl_add_u32 v13, v13, 4, v14")
    for jj in range(4):
        src = "v12" if jj % 2 == 0 else "v13"
        a(f"v_add_u32 v{VDW+jj}, {jj*8*3456 - jj*1024}, {src}")
    a(f"s_mul_i32 s{sM0X}, s{sWAVE}, 6144")
    a(f"s_sub_u32 s{sM0X}, s{sM0X}, 128")
    a(f"s_lshl_b32 s{sM0W}, s{sWAVE}, 12")
    a(f"s_mul_i32 s{sM0P}, s{sWAVE}, 10240")
    for k in range(4):
        if cfg.lead:
            a(f"s_cmp_eq_u32 s{sPHI}, {k}")
            a(f"s_cselect_b32 s{sDX+k}, 128, 0")
            a(f"s_cmp_eq_u32 s{sPHI}, {(k-1)&3}")
            a(f"s_cselect_b32 s{sDX+k}, -128, s{sDX+k}")
        else:
            a(f"s_mov_b32 s{sDX+k}, 0")
    a("s_waitcnt lgkmcnt(0)")
    stamp(a, cfg, 1)
    srd(a, sX, 4, S_ * D_ * 2)
    a(f"s_cmp_lt_u32 s{sWAVE}, 2")
    a(f"s_cselect_b32 s{sW}, s6, s8")
    a(f"s_cselect_b32 s{sW+1}, s7, s9")
    a(f"s_and_b32 s{sW+1}, s{sW+1}, 0xffff")
    a(f"s_mov_b32 s{sW+2}, {D_*F_*2}")
    a(f"s_mov_b32 s{sW+3}, 0x00020000")

    def dma_item(c):
        base = (c % 4) * SLOT
        tag = ("item", c)
        g = []
        if c < 10:
            if c == 0:
                xo = [I(f"s_max_i32 s{sXOFF}, s{sDX}, 0")]
            elif c == 9:
                xo = [I(f"s_min_i32 s{sXOFF}, s{sDX+1}, 0"), I(f"s_add_u32 s{sXOFF}, s{sXOFF}, {c*128}")]
            else:
                xo = [I(f"s_add_u32 s{sXOFF}, s{sDX + (c & 3)}, {c*128}")]
            g.append((xo, True))
            g.append(([I(f"s_mul_i32 s{sWOFF}, s{sXOFF}, 1728"), I(f"s_add_u32 m0, s{sM0W}, {base + 24576}")], True))
            for jj in range(4):
                o = f" offset:{jj*1024}" if jj else ""
                g.append(([VM(f"buffer_load_dwordx4 v{VDW+jj}, s[{sW}:{sW+3}], s{sWOFF} offen{o} lds", tag)], False))
            for half in range(2):
                g.append(([I(f"s_add_u32 m0, s{sM0X}, {base + half*3072 + 128}")], True))
                for i3 in range(3):
                    o = f" offset:{i3*1024}" if i3 else ""
                    g.append(([VM(f"buffer_load_dwordx4 v{VDX+half*3+i3}, s[{sX}:{sX+3}], s{sXOFF} offen{o} lds", tag)], False))
        else:
            p = c - 10
            for i in range(5):
                it = [I(f"s_add_u32 s{sXOFF}, s{sPC+i}, s{sPO[p]}")]
                if i % 2 == 0:
                    it.append(I(f"s_add_u32 m0, s{sM0P}, {base + (i//2)*4096}"))
                g.append((it, True))
                for hh in range(2):
                    k = 2 * (i % 2) + hh
                    o = f" offset:{k*1024}" if k else ""
                    g.append(([VM(f"buffer_load_dwordx4 v{VDP+k}, s[{sX}:{sX+3}], s{sXOFF} offen{o} lds", tag)], False))
        return g
    def dma_now(c):
        for its, setup in dma_item(c):
            for x in its:
                a(x)
            if setup and "m0" in its[-1].text:
                a("s_nop 0")
    dma_now(0)
    a(f"s_lshr_b32 s{sT}, s{sWAVE}, 1")
    a(f"s_mul_i32 s{sT}, s{sT}, {16*1280}")
    a(f"s_add_u32 s{sT}, s{sT}, {G*16*1280}")
    a(f"v_add_u32 v10, s{sT}, v10")
    a(f"v_add_u32 v11, s{sT}, v11")
    a(f"v_mov_b32 v{VDP}, v10")
    a(f"v_add_u32 v{VDP+1}, {10240 - 1024}, v11")
    a(f"v_subrev_u32 v{VDP+2}, 2048, v10")
    a(f"v_add_u32 v{VDP+3}, {10240 - 3072}, v11")
    a("v_and_b32 v5, 15, v1")
    a("v_lshrrev_b32 v7, 1, v5")
    a("v_xor_b32 v7, v6, v7")
    a("v_lshlrev_b32 v7, 4, v7")
    a(f"v_lshl_add_u32 v{VRX}, v5, 7, v7")
    a(f"v_xor_b32 v{VRX+1}, 64, v{VRX}")
    a(f"v_add_u32 v{VRX+2}, {2*SLOT}, v{VRX}")
    a(f"v_add_u32 v{VRX+3}, {2*SLOT}, v{VRX+1}")
    a("v_lshrrev_b32 v7, 2, v5")
    a("v_lshl_add_u32 v8, v6, 3, v7")
    a("v_lshrrev_b32 v9, 1, v7")
    a("v_and_b32 v10, 1, v6")
    a("v_lshl_add_u32 v9, v10, 1, v9")
    a(f"v_xor_b32 v9, s{sWAVE}, v9")
    a("v_lshlrev_b32 v9, 5, v9")
    a("v_lshl_add_u32 v8, v8, 7, v9")
    a("v_and_b32 v9, 3, v1")
    a("v_lshl_add_u32 v8, v9, 3, v8")
    a(f"v_add_u32 v{VRW}, 24576, v8")
    a(f"v_add_u32 v{VRW+1}, {24576 + 2*SLOT}, v8")
    a("v_and_b32 v7, 1, v6")
    a(f"s_lshl_b32 s{sT}, s{sRB}, 4")
    a(f"v_add_u32 v7, s{sT}, v7")
    a(f"v_mul_u32_u24 v7, {USTR}, v7")
    a("v_lshrrev_b32 v8, 1, v6")
    a("v_lshlrev_b32 v8, 8, v8")
    a("v_lshl_add_u32 v8, v5, 4, v8")
    a("v_add_u32 v7, v7, v8")
    a(f"s_lshl_b32 s{sT}, s{sL}, 11")
    a(f"s_lshl_b32 s{sT+1}, s{sWAVE}, 9")
    a(f"s_add_u32 s{sT}, s{sT}, s{sT+1}")
    a(f"v_add_u32 v{VHS}, s{sT}, v7")
    p2_setup(a, cfg)
    a(f"s_bitcmp1_b32 s{sWAVE}, 0")
    for i in range(5):
        a(f"s_cselect_b32 s{sPC+i}, s{sDX + ((5+i) & 3)}, s{sDX + (i & 3)}")
    a(f"s_cselect_b32 s{sT+6}, -128, 0")
    a(f"s_cselect_b32 s{sT+7}, 0, 128")
    a(f"s_cselect_b32 s{sT+8}, 640, 0")
    a(f"s_max_i32 s{sPC}, s{sPC}, s{sT+6}")
    a(f"s_min_i32 s{sPC+4}, s{sPC+4}, s{sT+7}")
    for i in range(5):
        a(f"s_add_u32 s{sPC+i}, s{sPC+i}, s{sT+8}")
        if i: a(f"s_add_u32 s{sPC+i}, s{sPC+i}, {i*128}")
    if not cfg.lead:
        a(f"s_mov_b32 s{sSEL}, 0")
    a(f"s_mul_i32 s{sPO[0]}, s{sSEL}, {32*1280}")
    a(f"s_sub_u32 s{sPO[1]}, {32*1280}, s{sPO[0]}")
    a(f"s_mul_i32 s{sHO[0]}, s{sSEL}, {2*USTR}")
    a(f"s_sub_u32 s{sHO[1]}, {(G+2)*USTR}, s{sHO[0]}")
    a(f"s_add_u32 s{sHO[0]}, s{sHO[0]}, {G*USTR}")
    dma_now(1)

    def xread(q):
        r = xr(q)
        if q < 20 * G:
            n, u = divmod(q, G)
            c, s = n >> 1, n & 1
            slot = c % 4
            base = VRX + s + (2 if slot >= 2 else 0)
            off = (slot & 1) * SLOT + u * 2048
        else:
            p, rem = divmod(q - 20 * G, 40)
            n, j = divmod(rem, 2)
            c, s = n >> 1, n & 1
            base = VRX + s + (2 if p == 0 else 0)
            off = (j * 10 + c) * 2048
        return DS(f"ds_read_b128 v[{r}:{r+3}], v{base} offset:{off}", ("x", q))
    def wread(n, mat, h):
        c, s = n >> 1, n & 1
        slot = c % 4
        off = (slot & 1) * SLOT + mat * 8192 + s * 4096 + h * 512
        r = 8 * n + 4 * mat + 2 * h
        return DS(f"ds_read_b64_tr_b16 a[{r}:{r+1}], v{VRW + (slot >> 1)} offset:{off}", ("w", n, mat))

    a(WAIT(nvm=(("item", 0),)))
    a("s_barrier")
    stamp(a, cfg, 2)
    a.setkeep(15)
    for h in range(2): a(wread(0, 0, h))
    a(xread(0))
    for h in range(2): a(wread(0, 1, h))
    for q in range(1, G): a(xread(q))

    sc = Sched(cap=2)
    NQ = 20 * G + 80
    for q in range(NQ):
        if q < 20 * G:
            n, u = divmod(q, G)
            acc = ACC1 + 8 * u
        else:
            p, rem = divmod(q - 20 * G, 40)
            n, j = divmod(rem, 2)
            acc = (ACCA if p == 0 else ACC1) + 8 * j
        x = xr(q)
        for mat in range(2):
            d = acc + 4 * mat
            w = 8 * n + 4 * mat
            csrc = "0" if n == 0 else f"v[{d}:{d+3}]"
            nds = [("x", q)] + ([("w", n, mat)] if q < 20 * G else [])
            sc.mf.append(MF(f"v_mfma_f32_16x16x32_bf16 v[{d}:{d+3}], a[{w}:{w+3}], v[{x}:{x+3}], {csrc}", nds=nds))
    SG = 2 * G
    bar = lambda c: SG * (2 * c + 1)
    sc.before(8, [KEEP(3)])
    for c in range(10):
        pre = []
        if cfg.steps:
            pre = [I(f"s_memtime s[{sT+8}:{sT+9}]")]
        pre += [WAIT(nvm=[("item", c + 1)], ds0=True)]
        if cfg.steps:
            pre += [I(f"v_writelane_b32 v0, s{sT+8}, {2*c}")]
            if c > 0:
                pre += [I(f"v_writelane_b32 v0, s{sT+6}, {2*c-1}")]
        pre += [I("s_barrier")]
        if cfg.steps:
            pre += [I(f"s_memtime s[{sT+6}:{sT+7}]")]
        sc.before(bar(c), pre)
    B11 = 2 * (20 * G + 40 - R)
    sc.before(B11, [WAIT(nvm=[("item", 11)]), I("s_barrier")])
    sc.add("misc", bar(9) + 1, bar(9) + 20, [I(f"v_add_u32 v{VRX}, {3*SLOT}, v{VRX}")])
    sc.add("misc", bar(9) + 1, bar(9) + 20, [I(f"v_add_u32 v{VRX+1}, {3*SLOT}, v{VRX+1}")])
    for q in range(G, NQ):
        e = max(0, 2 * (q - R) + 1)
        if q < 20 * G:
            n = q // G
            if n % 2 == 0:
                e = max(e, SG * (n - 1))
            dl = SG * n - 1
        else:
            e = max(e, bar(9) if q < 20 * G + 40 else B11); dl = 2 * q - 1
        sc.add("x", e, dl, xread(q))
    for n in range(1, 20):
        for mat in range(2):
            for h in range(2):
                sc.add("w", SG * (n - 1), SG * n - 6, wread(n, mat, h))
    t = 2.0
    for c in range(2, 12):
        av = 0 if c < 4 else bar(c - 4)
        t = max(t, av + 2)
        dl = bar(c - 1) - 1 if c < 11 else B11 - 1
        for its, setup in dma_item(c):
            if setup:
                sc.add("dma", max(av, int(t) - 2), dl, its, step=1)
            else:
                sc.add("dma", int(t), dl, its, step=1, name=("dma", c))
                t += cfg.dmap / 10.0
    for x in wdchk_loads():
        sc.add("chk", SG * cfg.nchk + 2, None, x, step=1)
    tst = wdchk_test("L_wdslow")
    tst[-1].append(LAB("L_wdback"))
    for its in tst:
        sc.add("chk", SG * (cfg.nchk + 2) + 2, None, its, step=1, name="chkend")
    for p in range(G // 2):
        e = SG * 19 + 4 * p + 3 + 8
        for its, step in epi_pair(ACC1 + 16 * p, ACC1 + 16 * p + 8, p * 2 * USTR, "hst1"):
            sc.add("epi", e, (20 * SG + 78 if p == 0 else None), its, step=step, name=("epi", p))
    for its, step in epi_pair(ACCA, ACCA + 8, f"s{sHO[0]}", "hst2"):
        sc.add("epi", 20 * SG + 79 + 8, None, its, step=step, name=("epi", "A"))
    nfree = min(11, (256 - WFREE) // 4)
    for j in range(70):
        if j < 24 + nfree:
            e = lambda pl: max(cfg.wd0, pl["chkend"] + 1)
        elif j < 24 + nfree + 20:
            p = 1 + (j - 24 - nfree) // 4
            e = lambda pl, p=p: pl[("epi", p)] + 1
        elif j < 24 + nfree + 24:
            e = lambda pl: pl[("epi", "A")] + 1
        else:
            e = 10 ** 6
        sc.add("wd", e, None, wload(j), step=cfg.wdp)
    if cfg.stamps:
        sc.before(20 * SG, stamp_it(cfg, 3))
    left = sc.emit(a, order=["x", "w", "misc", "dma", "chk", "epi", "wd"])
    print("placed:", {k: v for k, v in sc.placed.items()}, "left:", len(left), file=sys.stderr)
    stamp(a, cfg, 4)
    for q, its, step in left:
        assert q == "wd", q
    a("s_nop 7")
    for its, step in epi_pair(ACC1, ACC1 + 8, f"s{sHO[1]}", "hst2"):
        for x in its: a(x)
        if step: a("s_nop 0")
    left = [x for q, its, step in left for x in its]
    b1 = min(cfg.b1, len(left))
    for x in left[:b1]: a(x)
    p2_addr(a, cfg)
    a(WAIT(nvm=["hst2"]))
    a("s_barrier")
    a(VM(f"buffer_store_dword v{VNONCE}, v{VFLA}, s[{sFL}:{sFL+3}], 0 offen sc1", "fl"))
    stamp(a, cfg, 5)
    b2 = max(b1, len(left) - cfg.b2)
    for x in left[b1:b2]: a(x)
    a(VM(f"buffer_load_dword v{VFLAG}, v{VPOLL}, s[{sFL}:{sFL+3}], 0 offen sc1", "poll"))
    for x in left[b2:]: a(x)
    a(I(f"v_cmp_ne_u32 vcc, v{VFLAG}, v{VNONCE}", nvm=("poll",)))
    a(f"s_and_b64 vcc, vcc, s[{sMASK}:{sMASK+1}]")
    a("s_cbranch_scc1 L_hslow")

VRA, VWA, VOA = 28, 29, 30
RT = 172
REG = 21760
def p2_addr(a, cfg):
    a(f"s_lshr_b32 s{sT}, s{sRB2}, 2")
    a(f"s_lshl_b32 s{sT}, s{sT}, 4")
    a(f"s_and_b32 s{sT+1}, s{sRB2}, 3")
    a(f"s_add_u32 s{sT+2}, s{sT}, s{sT+1}")
    a(f"s_mul_i32 s{sT}, s{sT+2}, 54")
    a(f"s_mul_i32 s{sT+1}, s{sWAVE}, 14")
    a(f"s_add_u32 s{sT}, s{sT}, s{sT+1}")
    a(f"s_lshl_b32 s{sT}, s{sT}, 10")
    a(f"v_lshl_add_u32 v{VH}, v1, 4, s{sT}")
    for j in range(1, 4):
        a(f"v_add_u32 v{VH+j}, {j*4*USTR}, v{VH}")
    a("v_lshrrev_b32 v2, 4, v1")
    a("v_mul_u32_u24 v2, 272, v2")
    a("v_and_b32 v3, 15, v1")
    a("v_lshl_add_u32 v2, v3, 4, v2")
    a(f"s_mul_i32 s{sT}, s{sWAVE}, 5440")
    a(f"v_add_u32 v{VWA}, s{sT}, v2")
    a(f"s_mul_i32 s{sT}, s{sWAVE}, 40")
    a("v_min_u32 v2, 39, v1")
    a(f"v_add_u32 v2, s{sT}, v2")
    a("v_mul_u32_u24 v3, 6554, v2")
    a("v_lshrrev_b32 v3, 16, v3")
    a(f"v_mul_u32_u24 v{VRA}, 10, v3")
    a(f"v_sub_u32 v2, v2, v{VRA}")
    a(f"v_mul_u32_u24 v{VRA}, 544, v2")
    a(f"v_lshl_add_u32 v{VRA}, v3, 4, v{VRA}")
    a(f"s_lshl_b32 s{sT+2}, s{sT+2}, 4")
    a(f"v_add_u32 v3, s{sT+2}, v3")
    a("v_mul_u32_u24 v3, 1280, v3")
    a("v_lshl_add_u32 v3, v2, 4, v3")
    a(f"s_mul_i32 s{sT}, s{sCB}, 160")
    a(f"v_add_u32 v3, s{sT}, v3")
    a("v_cmp_gt_u32 vcc, 40, v1")
    a(f"v_mov_b32 v2, {BIG}")
    a("s_nop 0")
    a(f"v_cndmask_b32 v{VOA}, v2, v3, vcc")

def phase2(a, cfg):
    acc = lambda mu, nu: (mu * 5 + nu) * 4
    NHR = 20
    hreg = lambda hq: 80 + 4 * (hq % NHR)
    def hload(hq):
        mu, i = divmod(hq, 14)
        r = hreg(hq)
        return VM(f"buffer_load_dwordx4 a[{r}:{r+3}], v{VH+mu}, s[{sH}:{sH+3}], s{sSOFF+i} offen sc1", ("h", hq))
    a.label("L_hgo")
    stamp(a, cfg, 6)
    PD = cfg.pd
    for hq in range(PD):
        a(hload(hq))
    a.setkeep(15)
    sc = Sched(cap=2)
    for hq in range(56):
        mu, i = divmod(hq, 14)
        h = hreg(hq)
        for nu in range(5):
            c = acc(mu, nu)
            t, b = wreg(i * 5 + nu)
            csrc = "0" if i == 0 else f"a[{c}:{c+3}]"
            sc.mf.append(MF(f"v_mfma_f32_16x16x32_bf16 a[{c}:{c+3}], {rr(t,b)}, a[{h}:{h+3}], {csrc}",
                            nvm=[("h", hq), ("wd", i * 5 + nu)]))
    for hq in range(PD, 56):
        g = 5 * (hq - PD) + 1
        sc.add("ld", g, 5 * hq - 1, hload(hq), step=1)
    def red_writes(mu):
        return [DS(f"ds_write_b128 v{VWA}, a[{acc(mu,nu)}:{acc(mu,nu)+3}] offset:{(mu&1)*REG + nu*1088}", cost=2) for nu in range(5)]
    def red_round(mu):
        g = []
        for src in range(4):
            for hh in range(2):
                r = RT + (src * 2 + hh) * 4
                g.append(DS(f"ds_read_b128 v[{r}:{r+3}], v{VRA} offset:{(mu&1)*REG + src*5440 + hh*272}", ("r", mu, src, hh)))
        for k in range(8):
            g.append(I(f"v_add_f32 v{RT+k}, v{RT+k}, v{RT+8+k}", nds=[("r", mu, 0, k >> 2), ("r", mu, 1, k >> 2)]))
        for k in range(8):
            g.append(I(f"v_add_f32 v{RT+16+k}, v{RT+16+k}, v{RT+24+k}", nds=[("r", mu, 2, k >> 2), ("r", mu, 3, k >> 2)]))
        for k in range(8):
            g.append(I(f"v_add_f32 v{RT+k}, v{RT+k}, v{RT+16+k}"))
        for k in range(4):
            g.append(I(f"v_cvt_pk_bf16_f32 v{RT+32+k}, v{RT+2*k}, v{RT+2*k+1}"))
        g.append(I(f"s_mov_b32 s{sOS}, {mu*64*1280}"))
        g.append(VM(f"buffer_store_dwordx4 v[{RT+32}:{RT+35}], v{VOA}, s[{sOUT}:{sOUT+3}], s{sOS} offen{cfg.outpol}"))
        return g
    for mu in range(3):
        g0 = 70 * (mu + 1)
        for nu, x in enumerate(red_writes(mu)):
            sc.add("red", g0 - 5 + nu + 8, g0 + 22, x, step=1)
        sc.before(g0 + 28, [WAIT(ds0=True), I("s_barrier")])
        rd = red_round(mu)
        for k, x in enumerate(rd):
            e = g0 + 28 if k < 8 else g0 + 40
            sc.add("red", e, g0 + 69, x)
    left = sc.emit(a, order=["ld", "red"])
    assert not left
    stamp(a, cfg, 7)
    a("s_nop 3")
    for x in red_writes(3): a(x)
    a(WAIT(ds0=True))
    a("s_barrier")
    for x in red_round(3): a(x)

def slow_paths(a, cfg):
    a.label("L_wdslow")
    bound(a, "L_wdback")
    for x in wdchk_loads(): a(x.text)
    a("s_waitcnt vmcnt(0)")
    for its in wdchk_test("L_wdslow"):
        for x in its: a(x.text)
    a("s_branch L_wdback")
    a.label("L_hslow")
    bound(a, "L_hgo")
    a(f"s_sleep {cfg.slp}")
    a(f"buffer_load_dword v{VFLAG}, v{VPOLL}, s[{sFL}:{sFL+3}], 0 offen sc1")
    a("s_waitcnt vmcnt(0)")
    a(f"v_cmp_ne_u32 vcc, v{VFLAG}, v{VNONCE}")
    a(f"s_and_b64 vcc, vcc, s[{sMASK}:{sMASK+1}]")
    a("s_cbranch_scc1 L_hslow")
    a("s_branch L_hgo")

def spare(a, cfg):
    t0, t1, t2, t4 = sT+4, sT+5, sT+6, sT+8
    a.label("L_spare")
    sLS, sGW = sRB, sL
    a(f"s_sub_u32 s{sLS}, s{t1}, s{t4}")
    a(f"s_and_b32 s{t0}, s2, 7")
    a(f"s_lshl_b32 s{t2}, s{t0}, 2")
    a(f"s_cmp_eq_u32 s{t0}, 7")
    a(f"s_cselect_b32 s{t2}, 32, s{t2}")
    a(f"s_add_u32 s{t2}, s{t2}, s{sLS}")
    a(f"s_lshl_b32 s{sGW}, s{t2}, 2")
    a(f"s_mov_b32 s{sMYFL}, {BIG}")
    a(f"s_add_u32 s{sGW}, s{sGW}, s{sWAVE}")
    NW = 4 * NS
    T = 4
    a("v_lshrrev_b32 v4, 3, v1")
    a("v_and_b32 v5, 7, v1")
    a("v_lshrrev_b32 v6, 4, v1")
    a("v_and_b32 v12, 1, v6")
    a("v_lshlrev_b32 v12, 1, v12")
    a("v_xor_b32 v12, v5, v12")
    a("v_xor_b32 v13, 4, v12")
    a("v_mul_u32_u24 v14, 1280, v4")
    a("v_lshl_add_u32 v12, v12, 4, v14")
    a("v_lshl_add_u32 v13, v13, 4, v14")
    for jj in range(4):
        src = "v12" if jj % 2 == 0 else "v13"
        a(f"v_add_u32 v{16+jj}, {jj*8*1280 - jj*1024}, {src}")
    a(f"s_lshl_b32 s{sM0W}, s{sWAVE}, 14")
    def tile_scalars(i):
        a(f"s_add_u32 s{sT+2}, s{sGW}, {i*NW}")
        a(f"s_mul_i32 s{sT}, s{sT+2}, 6554")
        a(f"s_lshr_b32 s{sT}, s{sT}, 16")
        a(f"s_mul_i32 s{sT+1}, s{sT}, 10")
        a(f"s_sub_u32 s{sT+1}, s{sT+2}, s{sT+1}")
    a("s_waitcnt lgkmcnt(0)")
    stamp(a, cfg, 1)
    srd(a, sWDS, 10, F_ * D_ * 2)
    for i in range(T):
        tile_scalars(i)
        a(f"s_mul_i32 s{sT+3}, s{sT}, {32*1280}")
        a(f"s_lshl_b32 s{sT+1}, s{sT+1}, 7")
        a(f"s_add_u32 s{sT+3}, s{sT+3}, s{sT+1}")
        a(f"s_add_u32 m0, s{sM0W}, {i*4096}")
        a("s_nop 0")
        for jj in range(4):
            o = f" offset:{jj*1024}" if jj else ""
            a(f"buffer_load_dwordx4 v{16+jj}, s[{sWDS}:{sWDS+3}], s{sT+3} offen{o} lds")
    a("v_and_b32 v5, 15, v1")
    a("v_lshrrev_b32 v7, 2, v5")
    a("v_lshl_add_u32 v8, v6, 3, v7")
    a("v_lshrrev_b32 v9, 1, v7")
    a("v_and_b32 v10, 1, v6")
    a("v_lshl_add_u32 v9, v10, 1, v9")
    a("v_and_b32 v10, 3, v1")
    a("v_lshlrev_b32 v10, 3, v10")
    a("v_lshl_add_u32 v8, v8, 7, v10")
    a(f"v_add_u32 v8, s{sM0W}, v8")
    for q in range(4):
        a(f"v_xor_b32 v10, {q}, v9")
        a(f"v_lshl_add_u32 v{20+q}, v10, 5, v8")
    a("v_lshlrev_b32 v24, 4, v1")
    for q in range(1, 4):
        a(f"v_add_u32 v{24+q}, {q*USTR}, v24")
    p2_setup(a, cfg)
    for i in range(T):
        a(f"s_waitcnt vmcnt({4*(T-1)})")
        base = 32 + i * 16
        for q in range(4):
            for h in range(2):
                r = base + 4 * q + 2 * h
                a(f"ds_read_b64_tr_b16 v[{r}:{r+1}], v{20+q} offset:{i*4096 + h*512}")
        tile_scalars(i)
        a(f"s_mul_i32 s{sT+1}, s{sT+1}, 216")
        a(f"s_add_u32 s{sT+1}, s{sT+1}, s{sT}")
        a(f"s_lshl_b32 s{sT+1}, s{sT+1}, 10")
        a(f"s_cmp_ge_u32 s{sT}, 54")
        a(f"s_cselect_b32 s{sT+1}, {BIG}, s{sT+1}")
        a("s_waitcnt lgkmcnt(0)")
        for q in range(4):
            r = base + 4 * q
            a(f"buffer_store_dwordx4 v[{r}:{r+3}], v{24+q}, s[{sWD}:{sWD+3}], s{sT+1} offen sc1")
    stamp(a, cfg, 2)
    a("s_waitcnt vmcnt(0)")
    a("s_barrier")
    a(f"s_cmp_lg_u32 s{sWAVE}, 0")
    a("s_cbranch_scc1 L_sp_join")
    a("v_mov_b32 v28, 1")
    a("s_mov_b64 exec, 1")
    a(f"buffer_atomic_add v28, off, s[{sDBG}:{sDBG+3}], 0 sc0 sc1")
    a(f"s_memrealtime s[{sT}:{sT+1}]")
    a("s_waitcnt vmcnt(0) lgkmcnt(0)")
    a(f"s_or_b32 s{sT+2}, s{sT}, 1")
    a(f"v_mov_b32 v29, s{sT+2}")
    a(f"v_cmp_eq_u32 vcc, {NS-1}, v28")
    a("s_cbranch_vccz L_sp_notlast")
    a(f"buffer_store_dword v29, off, s[{sDBG}:{sDBG+3}], 0 offset:128 sc1")
    a.label("L_sp_notlast")
    a("s_mov_b64 exec, -1")
    a.label("L_sp_wd")
    bound(a, "L_sp_join")
    a("s_sleep 8")
    for x in wdchk_loads(): a(x.text)
    a("s_waitcnt vmcnt(0)")
    for its in wdchk_test("L_sp_wd"):
        for x in its: a(x.text)
    a.label("L_sp_join")
    a("s_barrier")
    stamp(a, cfg, 3)
    for x in wdchk_loads(): a(x.text)
    if cfg.touch:
        nline = 8640 if cfg.map2 == 0 else 17280
        per = -(-nline // (16 * 64))
        a(f"s_cmp_ge_u32 s{sLS}, 4")
        a("s_cbranch_scc1 L_sp_notouch")
        a(f"s_lshl_b32 s{sT}, s{sLS}, 2")
        a(f"s_add_u32 s{sT}, s{sT}, s{sWAVE}")
        a(f"s_lshl_b32 s{sT}, s{sT}, 13")
        if cfg.map2 == 0:
            a(f"s_and_b32 s{sT+1}, s2, 1")
            a(f"s_mul_i32 s{sT+1}, s{sT+1}, {20*USTR}")
            a(f"s_add_u32 s{sT}, s{sT}, s{sT+1}")
        a(f"v_lshl_add_u32 v2, v1, 7, s{sT}")
        for k in range(per):
            a(f"s_mov_b32 s{sT}, {k*16*8192}")
            a(f"buffer_load_dword v3, v2, s[{sWD}:{sWD+3}], s{sT} offen sc1")
        a.label("L_sp_notouch")
    for j in range(70):
        a(wload(j).text)
    a("s_waitcnt vmcnt(0)")
    stamp(a, cfg, 4)
    p2_addr(a, cfg)
    a("s_branch L_hslow")

def gen(cfg):
    setup_regs(cfg)
    out = kernel_header([f"; @launch grid=(256,1,1) block=(256,1,1) lds={LDS_TOTAL}"])
    a = Stream()
    entry(a, cfg)
    phase1(a, cfg)
    phase2(a, cfg)
    if cfg.stamps:
        a("s_waitcnt vmcnt(0)")
        stamp(a, cfg, 8)
        stamp_rt(a, cfg, 10)
        emit_stamps_out(a, cfg, 11)
    if cfg.spin:
        a("s_waitcnt vmcnt(0)")
        a.label("L_spin")
        a(f"s_memrealtime s[{sT}:{sT+1}]")
        a("s_waitcnt lgkmcnt(0)")
        a(f"s_sub_u32 s{sT}, s{sT}, s{sSPIN}")
        a(f"s_cmp_lt_u32 s{sT}, {cfg.spin*100}")
        a("s_cbranch_scc1 L_spin")
    a("s_endpgm")
    slow_paths(a, cfg)
    spare(a, cfg)
    a.label("L_end")
    a("s_endpgm")
    lines = a.resolve()
    if cfg.align:
        import fixalign
        lines, nn, nw = fixalign.fix(out + kernel_begin(KNAME), lines, "")
        print(f"align: {nn} nops, {nw} widened", file=sys.stderr)
    out += kernel_begin(KNAME) + "\n".join(lines) + "\n"
    out += ".fill 64, 4, 0xbf800000\n"
    out += rodata_begin() + kernel_desc(KNAME, 512, 102, 256)
    return out

if __name__ == "__main__":
    import argparse
    ap = argparse.ArgumentParser()
    ap.add_argument("-o", default="out.s")
    ap.add_argument("opts", nargs="*")
    args = ap.parse_args()
    kw = {}
    for o in args.opts:
        k, v = o.split("=")
        try: kw[k] = int(v)
        except ValueError: kw[k] = " " + v.replace("+", " ")
    cfg = Cfg(**kw)
    open(args.o, "w").write(gen(cfg))
```
